```python
import torch

def _softmax(x, axis=-1):
    return torch.softmax(x, dim=axis)
def _gelu(x):
    return torch.nn.functional.gelu(x, approximate="tanh")
def _silu(x):
    return torch.nn.functional.silu(x)
def _sigmoid(x):
    return torch.sigmoid(x)
def _layernorm(x, axis=-1, eps=1e-5):
    m = x.mean(dim=axis, keepdim=True)
    v = x.var(dim=axis, keepdim=True, unbiased=False)
    return (x - m) / torch.sqrt(v + eps)
def _scatter_add(tgt, idx, src, axis=0):
    return tgt.clone().index_add_(axis, idx, src)
def _segment_sum(src, seg, n):
    out = torch.zeros((n,) + src.shape[1:], dtype=src.dtype)
    return out.index_add_(0, seg, src)
def _pad(x, pw):
    flat = tuple(v for pair in reversed(pw) for v in pair)
    return torch.nn.functional.pad(x, flat)

kernel_name = 'parallel_sum__ssm_conv_h3__glu_gated_bilinear__prompt'

def setup_inputs():

    _w = (lambda a: (lambda t: t.to(torch.bfloat16) if t.is_floating_point() else t)(torch.as_tensor(a)))
    def _A_setup():
        B, S, D = 1, 2048, 448
        ks = 4
        return {
            "q": _w((lambda *s: torch.randn(*s, dtype=torch.bfloat16) * 0.05)(B, S, D)),
            "k": _w((lambda *s: torch.randn(*s, dtype=torch.bfloat16) * 0.2)(B, S, D)),
            "v": _w((lambda *s: torch.randn(*s, dtype=torch.bfloat16) * 0.2)(B, S, D)),
            "shift_k": _w((lambda *s: torch.randn(*s, dtype=torch.bfloat16) * 0.2)(D, ks) * 0.5),
            "ssm_k": _w((lambda *s: torch.randn(*s, dtype=torch.bfloat16) * 0.4)(D, S) * (1.0 / S ** 0.5)),
            "ssm_D": _w((lambda *s: torch.randn(*s, dtype=torch.bfloat16) * 0.2)(D)),
        }
    _A_in = _A_setup()

    def _B_setup():
        B, S, D, F = 1, 2048, 448, 1792
        return {
            "x": _w((lambda *s: torch.randn(*s, dtype=torch.bfloat16) * 0.05)(B, S, D)),
            "w_gate": _w((lambda *s: torch.randn(*s, dtype=torch.bfloat16) * 0.2)(D, F) * (D ** -0.5)),
            "w_up": _w((lambda *s: torch.randn(*s, dtype=torch.bfloat16) * 0.2)(D, F) * (D ** -0.5)),
            "w_down": _w((lambda *s: torch.randn(*s, dtype=torch.bfloat16) * 0.2)(F, D) * (F ** -0.5)),
        }
    _B_in = _B_setup()

    return {
        "A_q": _A_in["q"],
        "A_k": _A_in["k"],
        "A_v": _A_in["v"],
        "A_shift_k": _A_in["shift_k"],
        "A_ssm_k": _A_in["ssm_k"],
        "A_ssm_D": _A_in["ssm_D"],
        "B_x": _B_in["x"],
        "B_w_gate": _B_in["w_gate"],
        "B_w_up": _B_in["w_up"],
        "B_w_down": _B_in["w_down"],
    }

def reference(A_q, A_k, A_v, A_shift_k, A_ssm_k, A_ssm_D, B_x, B_w_gate, B_w_up, B_w_down):
    def _A_ref(q, k, v, shift_k, ssm_k, ssm_D):
        B, S, D = q.shape
        ks = shift_k.shape[-1]
        k_pad = _pad(k, ((0, 0), (ks - 1, 0), (0, 0)))
        k_shift = torch.zeros_like(k)
        for t in range(ks):
            k_shift = k_shift + k_pad[:, t:t + S, :] * shift_k[:, ks - 1 - t][None, None, :]
        kv = k_shift * v
        L = 2 * S
        kv_pad = _pad(kv, ((0, 0), (0, S), (0, 0)))
        kf_pad = _pad(ssm_k, ((0, 0), (0, S)))
        kv_f = (lambda x, axes=(-2,-1): torch.fft.rfft2(x.float(), dim=axes))(kv_pad[:, None, :, :], axes=(1, 2))
        kf_f = (lambda x, axes=(-2,-1): torch.fft.rfft2(x.float(), dim=axes))(kf_pad[:, None, :], axes=(1, 2))
        kf_f = (lambda x, *d: x.permute(*d))(kf_f, 1, 2, 0)
        y_f = kv_f * kf_f[None, :, :, :]
        y = (lambda x, s, axes=(-2,-1): torch.fft.irfft2(x, s=s, dim=axes).to(torch.bfloat16))(y_f, (1, L), axes=(1, 2))[:, 0, :S, :]
        y = y + kv * ssm_D[None, None, :]
        return q * y

    def _B_ref(x, w_gate, w_up, w_down):
        g = torch.einsum("bsd,df->bsf", x, w_gate)
        u = torch.einsum("bsd,df->bsf", x, w_up)
        h = g * u
        return torch.einsum("bsf,fd->bsd", h, w_down)

    x = A_q
    xn = _layernorm(x, axis=-1)
    return x + _A_ref(xn, A_k, A_v, A_shift_k, A_ssm_k, A_ssm_D) + _B_ref(xn, B_w_gate, B_w_up, B_w_down)
```

```python
import re

REG_RE = re.compile(r'\b([vas])(?:(\d+)\b|\[(\d+):(\d+)\])')

def regs_of(op):
    out = set()
    op = op.strip()
    if op in ('vcc',): return {('s', 106), ('s', 107)}
    if op == 'vcc_lo': return {('s', 106)}
    if op == 'vcc_hi': return {('s', 107)}
    if op == 'exec': return {('s', 126), ('s', 127)}
    if op == 'm0': return {('s', 124)}
    for m in REG_RE.finditer(op):
        f = m.group(1)
        if m.group(2) is not None: out.add((f, int(m.group(2))))
        else:
            for i in range(int(m.group(3)), int(m.group(4)) + 1): out.add((f, i))
    return out

def split_ops(s):
    ops, depth, cur = [], 0, ''
    for ch in s:
        if ch in '[(': depth += 1
        if ch in '])': depth -= 1
        if ch == ',' and depth == 0:
            ops.append(cur.strip()); cur = ''
        else: cur += ch
    if cur.strip(): ops.append(cur.strip())
    return ops

TRANS = ('v_exp_f32', 'v_log_f32', 'v_rcp_f32', 'v_rsq_f32', 'v_sqrt_f32', 'v_sin_f32', 'v_cos_f32', 'v_rcp_iflag_f32')

class Ins:
    __slots__ = ('text', 'mn', 'cls', 'dst', 'src', 'passes', 'srcc', 'srcab', 'storedata', 'states', 'mods')
    def __init__(self, text):
        self.text = text
        t = text.split(';')[0].strip()
        self.dst, self.src, self.srcc, self.srcab, self.storedata = set(), set(), set(), set(), set()
        self.passes = 0; self.states = 1; self.mods = ''
        if not t or t.endswith(':') or t.startswith('.'):
            self.mn = ''; self.cls = 'label' if t.endswith(':') else 'none'; self.states = 0; return
        parts = t.split(None, 1)
        mn = self.mn = parts[0]
        rest = parts[1] if len(parts) > 1 else ''
        ops = split_ops(rest)
        if ops:
            last = ops[-1]
            sp = re.match(r'^(\S+(?:\[[^\]]*\])?)\s*(.*)$', last)
            if sp and not last.startswith('hwreg') and not mn.startswith('s_waitcnt'):
                ops[-1] = sp.group(1); self.mods = sp.group(2)
        R = [regs_of(o) for o in ops]
        if mn == 's_nop':
            self.cls = 'salu'; self.states = int(ops[0], 0) + 1
        elif mn.startswith('v_mfma'):
            self.cls = 'mfma'
            self.passes = 8 if '32x32x16' in mn else 4 if '16x16x32' in mn else None
            assert self.passes, mn
            self.dst = R[0]; self.srcab = R[1] | R[2]; self.srcc = R[3]; self.src = self.srcab | self.srcc
        elif mn.startswith('v_'):
            self.cls = 'valu'
            if mn.startswith('v_cmp'):
                self.dst = R[0]; self.src = set().union(*R[1:])
            elif mn.startswith(('v_add_co', 'v_sub_co', 'v_addc_co', 'v_subb_co')):
                self.dst = R[0] | R[1]; self.src = set().union(*R[2:])
            elif mn.startswith('v_permlane') and 'swap' in mn:
                self.dst = R[0] | R[1]; self.src = R[0] | R[1]
            else:
                self.dst = R[0]; self.src = set().union(*R[1:]) if len(R) > 1 else set()
                if mn.startswith(('v_fmac', 'v_dot2c', 'v_pk_fmac', 'v_writelane')) or 'dst_unused:UNUSED_PRESERVE' in t or '_dpp' in mn:
                    self.src |= R[0]
                if mn.startswith('v_cndmask') and len(R) == 3: self.src |= regs_of('vcc')
        elif mn.startswith(('buffer_', 'global_')):
            self.cls = 'vmem'
            if mn in ('buffer_inv', 'buffer_wbl2'): pass
            elif 'store' in mn or 'atomic' in mn:
                self.src = set().union(*R)
                data = R[0] if mn.startswith('buffer_') else R[1]
                if 'x4' in mn or 'x3' in mn: self.storedata = data
                if 'atomic' in mn and 'sc0' in self.mods: self.dst = R[0]
            elif ' lds' in (' ' + self.mods) or '_lds_' in mn:
                self.src = set().union(*R) | regs_of('m0')
            else:
                self.dst = R[0]; self.src = set().union(*R[1:])
        elif mn.startswith('ds_'):
            self.cls = 'ds'
            if 'write' in mn: self.src = set().union(*R)
            else: self.dst = R[0]; self.src = set().union(*R[1:])
        elif mn.startswith('s_'):
            self.cls = 'salu'
            if mn.startswith(('s_cmp', 's_cbranch', 's_branch', 's_waitcnt', 's_barrier', 's_endpgm', 's_sleep', 's_setprio')):
                self.src = set().union(*R) if R else set()
            else:
                self.dst = R[0] if R else set(); self.src = set().union(*R[1:]) if len(R) > 1 else set()
                if 'saveexec' in mn: self.dst |= regs_of('exec')
        else:
            raise ValueError('unknown instr ' + t)

def need_states(p, c):
    n = 0
    vec = lambda s: {r for r in s if r[0] in 'va'}
    sc = lambda s: {r for r in s if r[0] == 's'}
    if p.cls == 'valu':
        pv, ps = vec(p.dst), sc(p.dst)
        if c.cls == 'mfma' and pv & c.src: n = max(n, 2)
        if c.cls == 'vmem' and ps & c.src: n = max(n, 5)
        if c.cls == 'valu':
            if ps & c.src: n = max(n, 4 if c.mn.startswith(('v_readlane', 'v_writelane')) else 2)
            if pv & c.src:
                if c.mn.startswith(('v_readlane', 'v_readfirstlane')): n = max(n, 1)
                if '_dpp' in c.mn or c.mn.startswith('v_permlane'): n = max(n, 2)
                if p.mn in TRANS or p.mn.replace('_e32', '').replace('_e64', '') in TRANS: n = max(n, 1)
                if '_sdwa' in p.mn or 'op_sel' in p.mods: n = max(n, 1)
            if p.mn.startswith('v_dot') and pv & (c.src | c.dst):
                n = max(n, 3)
                if c.mn == p.mn and p.mn.startswith('v_dot2c') and not (pv & (c.src - c.dst)): n = 0 if n == 3 else n
        if p.mn.startswith('v_dot') and c.cls in ('mfma', 'vmem', 'ds') and pv & c.src: n = max(n, 3)
        if c.cls == 'salu' and ps & c.src: n = max(n, 1)
    if p.cls == 'mfma':
        big = {4: 8, 8: 12}[p.passes]; ovl = {4: 6, 8: 10}[p.passes]; war = {4: 3, 8: 7}[p.passes]
        if c.cls == 'mfma':
            if p.dst & c.srcab: n = max(n, big)
            if p.dst & c.srcc and not (p.dst == c.srcc and p.passes == c.passes): n = max(n, ovl)
            if p.dst & c.dst and not (p.dst == c.dst and p.passes == c.passes): n = max(n, ovl)
        elif c.cls in ('valu', 'vmem', 'ds'):
            if p.dst & (c.src | c.dst): n = max(n, big)
            if c.cls == 'valu' and p.srcc & c.dst: n = max(n, war)
    if p.cls == 'salu' and ('s', 124) in p.dst and c.cls == 'vmem' and ('s', 124) in c.src: n = max(n, 1)
    if p.cls == 'vmem' and p.storedata and p.storedata & c.dst: n = max(n, 2 if c.cls == 'valu' else 1)
    return n

def fix_hazards(lines):
    out = []
    nins = 0
    for t in lines:
        c = Ins(t)
        if c.states:
            dist = 0; pad = 0
            for p in reversed(out):
                if dist >= 20: break
                if p.states == 0: continue
                need = need_states(p, c)
                if need > dist: pad = max(pad, need - dist)
                dist += p.states
            while pad > 0:
                k = min(pad, 16)
                out.append(Ins(f's_nop {k-1}')); pad -= k; nins += 1
        out.append(c)
    return [i.text for i in out], nins

class Asm:
    def __init__(self):
        self.L = []
        self.vm_n = 0; self.vm_done = 0
        self.lg_n = 0; self.lg_done = 0
    def __call__(self, s):
        for l in s.split('\n'):
            if l.strip(): self.L.append(l.strip())
    def vm(self, s):
        self(s); self.vm_n += 1; return self.vm_n
    def lg(self, s):
        self(s); self.lg_n += 1; return self.lg_n
    def wait(self, vm=None, lg=None):
        parts = []
        if vm is not None and vm > self.vm_done:
            n = self.vm_n - vm
            if n <= 63:
                parts.append(f'vmcnt({n})')
            else:
                parts.append('vmcnt(63)'); vm = self.vm_n - 63
            self.vm_done = vm
        if lg is not None and lg > self.lg_done:
            n = self.lg_n - lg
            if n <= 15:
                parts.append(f'lgkmcnt({n})')
            else:
                parts.append('lgkmcnt(15)'); lg = self.lg_n - 15
            self.lg_done = lg
        if parts: self('s_waitcnt ' + ' '.join(parts))
    def wait_all(self, vm=True, lg=True):
        parts = []
        if vm: parts.append('vmcnt(0)'); self.vm_done = self.vm_n
        if lg: parts.append('lgkmcnt(0)'); self.lg_done = self.lg_n
        self('s_waitcnt ' + ' '.join(parts))
    def srd(self, d, lo, nbytes, add=None):
        if add is None:
            self(f's_mov_b32 s{d}, s{lo}\ns_mov_b32 s{d+1}, s{lo+1}')
        else:
            self(f's_add_u32 s{d}, s{lo}, {add}\ns_addc_u32 s{d+1}, s{lo+1}, 0')
        self(f's_mov_b32 s{d+2}, {nbytes}\ns_mov_b32 s{d+3}, 0x00020000')
    def text(self):
        lines, n = fix_hazards(self.L)
        return '\n'.join(('' if l.endswith(':') else '    ') + l for l in lines), n

def vr(a, n=1, f='v'):
    return f'{f}{a}' if n == 1 else f'{f}[{a}:{a+n-1}]'
def ar(a, n=1): return vr(a, n, 'a')
def sr(a, n=1): return vr(a, n, 's')

HEADER = '''; Kernarg layout (104 bytes, ptrs only, base s[0:1]): q,k,v,shift_k,ssm_k,ssm_D,B_x,w_gate,w_up,w_down,out,debug,ws
'''
def kernel_text(name, body):
    return f'''.globl {name}
.p2align 8
.type {name},@function
{name}:
{body}
'''
def kd_text(name, vgpr, accum, sgpr=102):
    return f'''.p2align 6
.amdhsa_kernel {name}
  .amdhsa_next_free_vgpr {vgpr}
  .amdhsa_next_free_sgpr {sgpr}
  .amdhsa_accum_offset {accum}
  .amdhsa_group_segment_fixed_size 0
  .amdhsa_kernarg_size 104
  .amdhsa_user_sgpr_count 2
  .amdhsa_user_sgpr_kernarg_segment_ptr 1
  .amdhsa_system_sgpr_workgroup_id_x 1
.end_amdhsa_kernel
'''
```

```python
from asmfw import *
KN = "parallel_sum__ssm_conv_h3__glu_gated_bilinear__prompt"
S, D, F = 2048, 448, 1792
WS_H = 0
WS_WDT = 0x700000
WS_KVT = WS_WDT + 7 * 112 * 2048
WS_YT = WS_KVT + 448 * 4096
WS_ST = WS_YT + 448 * 4096
WS_END = WS_ST + 2048 * 8
XB = S * D * 2
WB = D * F * 2
P_Q, P_K, P_V, P_SH, P_SSM, P_SD, P_BX, P_WG = 16, 18, 20, 22, 24, 26, 28, 30
P_WU, P_WD, P_OUT, P_DBG, P_WS = 32, 34, 36, 38, 40

def prologue(a, nwg):
    a(f's_cmp_ge_u32 s2, {nwg}\ns_cbranch_scc1 {a.endl}')
    a('s_load_dwordx16 s[16:31], s[0:1], 0')
    a('s_load_dwordx8 s[32:39], s[0:1], 64')
    a('s_load_dwordx2 s[40:41], s[0:1], 96')
    a('v_lshrrev_b32 v1, 6, v0')
    a('v_and_b32 v2, 63, v0')
    a('v_readfirstlane_b32 s3, v1')

def prep_body(a, sP):
    a.srd(44, P_WD, WB); a.srd(48, P_WS, WS_END); a.srd(52, P_K, XB); a.srd(56, P_V, XB); a.srd(60, P_SH, 448 * 8)
    a(f's_lshl_b32 s4, s{sP}, 6\ns_lshl_b32 s5, s3, 4\ns_add_u32 s4, s4, s5')
    a('s_mul_i32 s5, s4, 896')
    a('v_lshlrev_b32 v3, 4, v2')
    a('v_add_u32 v4, s5, v3')
    a(f's_lshl_b32 s6, s{sP}, 2\ns_add_u32 s6, s6, s3\ns_min_u32 s6, s6, 111')
    a('s_mul_i32 s7, s6, 14336')
    a('s_mul_i32 s8, s3, 14336')
    for i in range(14):
        a(f's_add_u32 m0, s8, {i*1024}')
        a(f's_add_u32 s9, s7, {i*1024}')
        twd = a.vm('buffer_load_dwordx4 v3, s[44:47], s9 offen lds')
    a('v_lshlrev_b32 v5, 6, v2')
    tsh = [a.vm(f'buffer_load_dwordx4 {vr(16+4*i,4)}, v5, s[60:63], 0 offen offset:{16*i}') for i in range(4)]
    tk = []
    for i in range(3):
        a(f'v_subrev_u32 v{6+i}, {(3-i)*896}, v4')
        tk.append(a.vm(f'buffer_load_dwordx4 {vr(32+4*i,4)}, v{6+i}, s[52:55], 0 offen'))
    tv = []
    for i in range(16):
        a(f's_mov_b32 s9, {i*896}')
        tk.append(a.vm(f'buffer_load_dwordx4 {vr(44+4*i,4)}, v4, s[52:55], s9 offen'))
        tv.append(a.vm(f'buffer_load_dwordx4 {vr(108+4*i,4)}, v4, s[56:59], s9 offen'))
    a('v_lshrrev_b32 v5, 5, v2\nv_lshlrev_b32 v5, 2, v5')
    a('v_bfe_u32 v6, v2, 2, 2\nv_add_u32 v5, v5, v6')
    a('v_mul_u32_u24 v5, 896, v5')
    a('v_bfe_u32 v6, v2, 4, 1\nv_lshlrev_b32 v6, 5, v6')
    a('v_and_b32 v7, 3, v2\nv_lshlrev_b32 v7, 3, v7')
    a('v_add3_u32 v5, v5, v6, v7\nv_add_u32 v5, s8, v5')
    a.wait(vm=twd)
    for dt in range(14):
        r = dt * 4
        a.lg(f'ds_read_b64_tr_b16 {ar(r,2)}, v5 offset:{dt*64}')
        a.lg(f'ds_read_b64_tr_b16 {ar(r+2,2)}, v5 offset:{dt*64+7168}')
    a(f's_lshl_b32 s9, s6, 11\ns_add_u32 s9, s9, {WS_WDT}')
    a.wait_all(vm=False)
    for dt in range(14):
        a(f's_add_u32 s10, s9, {(dt>>1)*112*2048 + (dt&1)*1024}')
        tws = a.vm(f'buffer_store_dwordx4 {ar(dt*4,4)}, v3, s[48:51], s10 offen sc1')
    a.t_wdt = tws
    a.wait(vm=tsh[-1])
    a('s_mov_b32 s11, 0xffff0000')
    for c in range(8):
        for j in range(4):
            src = 16 + 2 * c + (j >> 1)
            if j & 1: a(f'v_and_b32 v{172+8*j+c}, s11, v{src}')
            else: a(f'v_lshlrev_b32 v{172+8*j+c}, 16, v{src}')
    def unpack(dst, src):
        for p in range(4):
            a(f'v_lshlrev_b32 v{dst+2*p}, 16, v{src+p}')
            a(f'v_and_b32 v{dst+2*p+1}, s11, v{src+p}')
    for i in range(3):
        a.wait(vm=tk[i]); unpack(204 + 8 * (i % 4), 32 + 4 * i)
    a('v_and_b32 v9, 7, v2\ns_lshl_b32 s9, s3, 1')
    a('v_xor_b32 v10, s9, v9\nv_xor_b32 v11, 1, v10')
    a('v_lshlrev_b32 v9, 10, v2\nv_add_u32 v9, 57344, v9')
    a('v_lshl_add_u32 v10, v10, 4, v9\nv_lshl_add_u32 v11, v11, 4, v9')
    for m in range(2):
        outs = {}
        for rr in range(8):
            s = 8 * m + rr
            i = s + 3
            a.wait(vm=tv[s])
            unpack(204 + 8 * (i % 4), 32 + 4 * i)
            unpack(236, 108 + 4 * s)
            dst = 244 if rr % 2 == 0 else 16
            for p in range(4):
                d = vr(dst + 2 * p, 2)
                a(f'v_pk_mul_f32 {d}, {vr(172+2*p,2)}, {vr(204+8*(i%4)+2*p,2)}')
            for j in (1, 2, 3):
                for p in range(4):
                    d = vr(dst + 2 * p, 2)
                    a(f'v_pk_fma_f32 {d}, {vr(172+8*j+2*p,2)}, {vr(204+8*((i-j)%4)+2*p,2)}, {d}')
            for p in range(4):
                d = vr(dst + 2 * p, 2)
                a(f'v_pk_mul_f32 {d}, {d}, {vr(236+2*p,2)}')
            if rr % 2 == 1:
                j = (7 - rr) // 2
                for c in range(8):
                    t = 108 + 4 * (s - 1) + c
                    a(f'v_cvt_pk_bf16_f32 v{t}, v{16+c}, v{244+c}')
                    outs[(c, j)] = t
            if rr % 4 == 3:
                j = (7 - rr) // 2
                for c in range(8):
                    a.lg(f'ds_write2_b32 v{10+m}, v{outs[(c,j)]}, v{outs[(c,j+1)]} offset0:{c*32+j} offset1:{c*32+j+1}')
    a.wait_all(vm=False)
    a('s_barrier')
    a('v_and_b32 v5, 7, v0\nv_xor_b32 v6, s3, v5\nv_xor_b32 v7, 4, v6')
    a('v_lshrrev_b32 v8, 3, v0\nv_lshlrev_b32 v9, 7, v8\nv_add_u32 v9, 57344, v9')
    a('v_lshl_add_u32 v6, v6, 4, v9\nv_lshl_add_u32 v7, v7, 4, v9')
    tl = [a.lg(f'ds_read_b128 {vr(16+4*i,4)}, v{6+(i&1)} offset:{i*4096}') for i in range(14)]
    a('v_lshlrev_b32 v9, 12, v8\nv_lshl_add_u32 v9, v5, 4, v9')
    a(f's_lshl_b32 s9, s{sP}, 7\ns_add_u32 s9, s9, {WS_KVT}')
    for i in range(14):
        a(f's_add_u32 s10, s9, {i*32*4096}')
        a.wait(lg=tl[i])
        a.vm(f'buffer_store_dwordx4 {vr(16+4*i,4)}, v9, s[48:51], s10 offen sc1')

def k_prep():
    a = Asm(); a.endl = 'L_prep_end'
    prologue(a, 32)
    a('s_waitcnt lgkmcnt(0)')
    prep_body(a, 2)
    a.wait_all()
    a('L_prep_end:\ns_endpgm')
    return a

def decode_role(a):
    a('s_and_b32 s4, s2, 7\ns_lshr_b32 s5, s2, 3')
    a(f's_cmp_ge_u32 s5, 28\ns_cbranch_scc1 {a.helper}')
    a('s_mul_i32 s6, s5, 37\ns_lshr_b32 s6, s6, 8')
    a('s_mul_i32 s7, s6, 7\ns_sub_u32 s66, s5, s7')
    a('s_lshr_b32 s7, s4, 1\ns_lshl_b32 s7, s7, 2\ns_add_u32 s64, s7, s6')
    a('s_and_b32 s67, s4, 1\ns_mul_i32 s7, s67, 7\ns_add_u32 s65, s7, s66')
    a('s_lshl_b32 s7, s6, 1\ns_add_u32 s68, s7, s66')
    a('s_cmp_ge_u32 s68, 7\ns_cselect_b32 s7, 7, 0\ns_sub_u32 s68, s68, s7')

XF = 16
ACCB = 128
ACCA = 0
WF = 64
VA = 192
VX = 204
VW = 208
VXD = 209
VSEL = 212
VSUM = 216
VM, VR2, VMU = 220, 221, 222
VSS = 224
VT = 228
VHO = 252

def slot_of(q):
    return [7, 8, 9, 0, 1, 2, 3, 4, 5, 6, 7, 8, 9, 0][q]

def k_gemm1():
    a = Asm(); a.endl = 'L_g1_end'; a.helper = 'L_g1_end'
    prologue(a, 256)
    decode_role(a)
    for i in range(7):
        a(f's_add_u32 s{70+i}, s68, {i}\ns_cmp_ge_u32 s{70+i}, 7\ns_cselect_b32 s7, 7, 0\ns_sub_u32 s{70+i}, s{70+i}, s7')
    a('v_lshrrev_b32 v3, 3, v2\nv_and_b32 v4, 7, v2\nv_lshrrev_b32 v5, 1, v3\nv_xor_b32 v5, v5, v4')
    a(f'v_mul_u32_u24 v6, 896, v3\nv_lshl_add_u32 v{VXD}, v5, 4, v6\nv_xor_b32 v{VXD+1}, 64, v{VXD}')
    a('s_lshl_b32 s4, s64, 2\ns_add_u32 s4, s4, s3\ns_mul_i32 s69, s4, 28672')
    a('s_mul_i32 s77, s3, 28672')
    a('s_waitcnt lgkmcnt(0)')
    a.srd(44, P_Q, XB)
    a('s_and_b32 s4, s3, 1\ns_cmp_eq_u32 s4, 0')
    a(f's_cselect_b32 s48, s{P_WG}, s{P_WU}\ns_cselect_b32 s49, s{P_WG+1}, s{P_WU+1}\ns_mov_b32 s50, {WB}\ns_mov_b32 s51, 0x00020000')
    a.srd(52, P_WS, WS_END)
    tx = []
    for i in range(7):
        a(f's_lshl_b32 s5, s{70+i}, 7\ns_add_u32 s5, s5, s69')
        for rg in range(4):
            a(f's_add_u32 m0, s77, {(rg*7+i)*1024}')
            a(f's_add_u32 s6, s5, {rg*8*896}')
            t = a.vm(f'buffer_load_dwordx4 v{VXD+(rg&1)}, s[44:47], s6 offen lds')
        tx.append(t)
    a('s_lshr_b32 s5, s3, 1\ns_lshl_b32 s5, s5, 3\ns_lshl_b32 s6, s4, 2')
    a('v_bfe_u32 v5, v3, 1, 1\nv_lshlrev_b32 v5, 1, v5\nv_or_b32 v5, s6, v5\nv_xor_b32 v5, v5, v4')
    a(f'v_add_u32 v6, s5, v3\nv_mul_u32_u24 v6, 3584, v6\nv_lshl_add_u32 v{VW}, v5, 4, v6')
    a('s_lshl_b32 s5, s65, 8')
    for i in range(7):
        a(f's_mul_i32 s{80+i}, s{70+i}, {64*3584}\ns_add_u32 s{80+i}, s{80+i}, s5')
    a('s_lshl_b32 s78, s3, 10')
    tw = {}
    def wdma(q, ks):
        a(f's_add_u32 m0, s78, {slot_of(q)*16384 + ks*4096}')
        a(f's_add_u32 s6, s{80+q%7}, {ks*16*3584 + (q//7)*128}')
        tw[(q, ks)] = a.vm(f'buffer_load_dwordx4 v{VW}, s[48:51], s6 offen lds')
    for q in range(3):
        for ks in range(4): wdma(q, ks)
    a('v_and_b32 v3, 31, v2\nv_lshrrev_b32 v4, 5, v2\nv_lshrrev_b32 v5, 3, v3\nv_mul_u32_u24 v5, 7168, v5')
    a('v_and_b32 v6, 7, v3\nv_lshl_add_u32 v5, v6, 7, v5\nv_add_u32 v5, s77, v5')
    a('v_bfe_u32 v6, v3, 1, 3\nv_xor_b32 v6, v6, v4')
    for ks in range(4):
        a(f'v_xor_b32 v7, {2*ks}, v6\nv_lshl_add_u32 v{VX+ks}, v7, 4, v5')
    a('v_bfe_u32 v3, v2, 4, 1\nv_bfe_u32 v5, v2, 2, 2\nv_and_b32 v6, 3, v2')
    a('v_lshl_add_u32 v7, v4, 1, v3\nv_lshlrev_b32 v7, 10, v7\nv_lshl_add_u32 v7, v5, 7, v7\nv_lshl_add_u32 v7, v6, 3, v7')
    a('v_lshrrev_b32 v8, 1, v5\nv_lshl_add_u32 v8, v3, 1, v8')
    for nt in range(4):
        a(f'v_xor_b32 v9, {nt}, v8\nv_lshl_add_u32 v{VA+nt}, v9, 5, v7')
        a(f'v_add_u32 v{VA+4+nt}, 0x10000, v{VA+nt}\nv_add_u32 v{VA+8+nt}, 0x20000, v{VA+nt}')
    a('v_bfe_u32 v5, v2, 2, 1\nv_cmp_eq_u32 vcc, v5, v3')
    a(f'v_mov_b32 v6, 0x3f803f80\nv_cndmask_b32 v{VSEL}, 0, v6, vcc')
    for i in range(1, 4): a(f'v_mov_b32 v{VSEL+i}, v{VSEL}')
    a(f'v_lshlrev_b32 v{VHO}, 4, v2')
    a('s_lshl_b32 s5, s64, 1\ns_lshr_b32 s6, s3, 1\ns_add_u32 s5, s5, s6\ns_mul_i32 s5, s5, 112')
    a('s_lshl_b32 s6, s65, 3\ns_add_u32 s5, s5, s6\ns_lshl_b32 s5, s5, 11\ns_lshl_b32 s6, s4, 10\ns_add_u32 s79, s5, s6')
    prev = None
    for i in range(7):
        a.wait(vm=tx[i])
        cur = [a.lg(f'ds_read_b128 {vr(XF+16*i+4*ks,4)}, v{VX+ks} offset:{i*1024}') for ks in range(4)]
        if prev is not None:
            for ks in range(4):
                a.wait(lg=prev[ks])
                c = '0' if (i == 1 and ks == 0) else vr(VSUM, 4)
                a(f'v_mfma_f32_16x16x32_bf16 {vr(VSUM,4)}, {vr(VSEL,4)}, {vr(XF+16*(i-1)+4*ks,4)}, {c}')
        prev = cur
    for ks in range(4):
        a.wait(lg=prev[ks])
        a(f'v_mfma_f32_16x16x32_bf16 {vr(VSUM,4)}, {vr(VSEL,4)}, {vr(XF+16*6+4*ks,4)}, {vr(VSUM,4)}')
    a('s_barrier')
    pend = [(q, ks) for q in range(3, 10) for ks in range(4)]
    a(f'v_mul_f32 v{VMU}, {hex(f32bits(1.0/448))}, v{VSUM}')
    a(f'v_cvt_pk_bf16_f32 v{VM}, v{VMU}, v{VMU}\nv_lshlrev_b32 v{VM}, 16, v{VM}')
    a('s_mov_b32 s8, 0xffff0000')
    for i in range(4): a(f'v_mov_b32 v{VSS+i}, 0')
    for p in range(112):
        r = XF + p; t = VT + 2 * (p % 4)
        a(f'v_lshlrev_b32 v{t}, 16, v{r}\nv_and_b32 v{t+1}, s8, v{r}')
        a(f'v_sub_f32 v{t}, v{t}, v{VM}\nv_sub_f32 v{t+1}, v{t+1}, v{VM}')
        a(f'v_cvt_pk_bf16_f32 v{r}, v{t}, v{t+1}')
        a(f'v_fmac_f32 v{VSS+(2*p)%4}, v{t}, v{t}\nv_fmac_f32 v{VSS+(2*p+1)%4}, v{t+1}, v{t+1}')
        if p % 4 == 3 and pend: wdma(*pend.pop(0))
    a(f'v_add_f32 v{VSS}, v{VSS}, v{VSS+1}\nv_add_f32 v{VSS+2}, v{VSS+2}, v{VSS+3}\nv_add_f32 v{VSS}, v{VSS}, v{VSS+2}')
    a(f'v_mov_b32 v{VSS+1}, v{VSS}\nv_permlane32_swap_b32 v{VSS}, v{VSS+1}\nv_add_f32 v{VSS}, v{VSS}, v{VSS+1}')
    a(f'v_sub_f32 v{VT}, v{VMU}, v{VM}\nv_mul_f32 v{VT}, v{VT}, v{VT}')
    a(f'v_mul_f32 v{VSS}, {hex(f32bits(1.0/448))}, v{VSS}\nv_sub_f32 v{VSS}, v{VSS}, v{VT}\nv_max_f32 v{VSS}, 0, v{VSS}')
    def rbf(r): a(f'v_cvt_pk_bf16_f32 v{r}, v{r}, v{r}\nv_lshlrev_b32 v{r}, 16, v{r}')
    rbf(VSS)
    a(f'v_add_f32 v{VSS}, {hex(f32bits(1e-5))}, v{VSS}'); rbf(VSS)
    a(f'v_sqrt_f32 v{VSS}, v{VSS}'); rbf(VSS)
    a(f'v_rcp_f32 v{VM+1}, v{VSS}')
    a(f'v_and_b32 v3, 31, v2\nv_lshlrev_b32 v3, 3, v3')
    a(f's_lshl_b32 s5, s64, 2\ns_add_u32 s5, s5, s3\ns_lshl_b32 s5, s5, 8\ns_add_u32 s5, s5, {WS_ST}')
    a.vm(f'buffer_store_dwordx2 {vr(VM,2)}, v3, s[52:55], s5 offen')
    a(f'v_mul_f32 v{VMU}, v{VM+1}, v{VM+1}')
    def rd(step):
        q, ks = divmod(step, 4)
        off = slot_of(q) * 16384 + ks * 4096
        base = VA + 4 * (off >> 16); off &= 0xffff
        ops = []
        for nt in range(4):
            r = WF + 16 * (step & 1) + 4 * nt
            ops.append(f'ds_read_b64_tr_b16 {ar(r,2)}, v{base+nt} offset:{off}')
            ops.append(f'ds_read_b64_tr_b16 {ar(r+2,2)}, v{base+nt} offset:{off+512}')
        return ops
    def epi_ops(stage):
        ops = []
        for nt in range(4):
            for e in range(8):
                t = VT + e
                if stage == 0:
                    ops.append(f'v_accvgpr_read_b32 v{t}, a{ACCA+16*nt+e}')
                    ops.append(f'v_accvgpr_read_b32 v{VT+8+(e&1)}, a{ACCA+16*nt+8+e}')
                    ops.append(f'v_mul_f32 v{t}, v{t}, v{VMU}')
                    ops.append(f'v_mul_f32 v{t}, v{t}, v{VT+8+(e&1)}')
                else:
                    ops.append(f'v_mul_f32 v{t}, v{ACCB+16*nt+e}, v{VMU}')
                    ops.append(f'v_mul_f32 v{t}, v{t}, v{ACCB+16*nt+8+e}')
            o = VT + 12 + 4 * (nt & 1)
            for j in range(4):
                ops.append(f'v_cvt_pk_bf16_f32 v{o+j}, v{VT+2*j}, v{VT+2*j+1}')
            ops.append(('st', f's_add_u32 s6, s79, {(stage*4+nt)*2048}', f'buffer_store_dwordx4 {vr(o,4)}, v{VHO}, s[52:55], s6 offen sc1'))
        return ops
    a.wait(vm=tw[(0, 3)])
    a('s_barrier')
    tr = {0: [a.lg(o) for o in rd(0)]}
    fill = []
    for step in range(56):
        q, ks = divmod(step, 4)
        stage = q // 7
        if step == 28: fill = epi_ops(0)
        nxt = rd(step + 1) if step + 1 < 56 else []
        if ks == 3 and q + 1 < 14:
            a.wait(lg=tr[step][-1], vm=tw[(q + 1, 3)])
            a('s_barrier')
            if q + 10 < 14: pend += [(q + 10, k2) for k2 in range(4)]
        tr[step + 1] = []
        for nt in range(4):
            a.wait(lg=tr[step][2 * nt + 1])
            acc = ar(ACCA + 16 * nt, 16) if stage == 0 else vr(ACCB + 16 * nt, 16)
            c = '0' if step % 28 == 0 else acc
            a(f'v_mfma_f32_32x32x16_bf16 {acc}, {ar(WF+16*(step&1)+4*nt,4)}, {vr(XF+4*(step%28),4)}, {c}')
            for o in nxt[2 * nt: 2 * nt + 2]: tr[step + 1].append(a.lg(o))
            if nt % 2 == 1 and pend: wdma(*pend.pop(0))
            elif step > 28:
                for _ in range(3):
                    if fill:
                        o = fill.pop(0)
                        if isinstance(o, tuple): a(o[1]); a.vm(o[2])
                        else: a(o)
    assert not fill and not pend
    for o in epi_ops(1):
        if isinstance(o, tuple): a(o[1]); a.vm(o[2])
        else: a(o)
    a.wait_all()
    a('L_g1_end:\ns_endpgm')
    return a

import struct
def f32bits(x): return struct.unpack('<I', struct.pack('<f', x))[0]

CS = 4160
HC = 8 * CS
UB = 2 * HC
US = 4608
RB_ = UB + 2 * US
def k_conv():
    a = Asm(); a.endl = 'L_cv_end'
    prologue(a, 224)
    a('s_lshl_b32 s4, s2, 13')
    a('v_lshlrev_b32 v3, 4, v0\nv_subrev_u32 v4, 16, v3')
    a('s_waitcnt lgkmcnt(0)')
    a.srd(44, P_SSM, 4096, add='s4')
    a('s_add_u32 s5, s4, 4096')
    a.srd(48, P_SSM, 4096, add='s5')
    a.srd(52, P_WS, WS_END)
    a.srd(56, P_SD, 896)
    th = []
    for ch in range(2):
        a.vm(f'buffer_load_dwordx4 {vr(16+8*ch,4)}, v4, s[{44+4*ch}:{47+4*ch}], 0 offen')
        th.append(a.vm(f'buffer_load_dwordx4 {vr(20+8*ch,4)}, v3, s[{44+4*ch}:{47+4*ch}], 0 offen'))
    tu = []
    for ch in range(2):
        a(f's_add_u32 s6, s4, {WS_KVT + ch*4096}')
        tu.append(a.vm(f'buffer_load_dwordx4 {vr(32+4*ch,4)}, v3, s[52:55], s6 offen sc1'))
    a('s_lshl_b32 s6, s2, 2\nv_mov_b32 v5, s6')
    tD = a.vm('buffer_load_dword v15, v5, s[56:59], 0 offen')
    for i in range(4): a(f'v_mov_b32 v{40+i}, 0')
    a(f'v_and_b32 v5, 15, v0\nv_mul_u32_u24 v5, {CS}, v5')
    a.lg(f'ds_write_b128 v5, v[40:43]')
    a(f'v_and_b32 v5, 31, v0\nv_min_u32 v5, 29, v5\nv_lshlrev_b32 v5, 4, v5\nv_add_u32 v5, {UB}, v5')
    a.lg(f'ds_write_b128 v5, v[40:43]')
    a.lg(f'ds_write_b128 v5, v[40:43] offset:{US}')
    a('v_add_u32 v5, 16, v3')
    for ch in range(2):
        w = 16 + 8 * ch
        a.wait(vm=th[ch])
        Z, Z2, W2 = 48, 56, 64
        for n in range(6): a(f'v_alignbit_b32 v{Z+n}, v{w+n+1}, v{w+n}, 16')
        for n in range(1, 7): a(f'v_alignbit_b32 v{Z2+n-1}, v{w+n+1}, v{w+n}, 16')
        for n in range(1, 7): a(f'v_mov_b32 v{W2+n-1}, v{w+n}')
        src = {0: Z, 1: W2, 2: Z2, 3: w + 2, 4: Z + 2, 5: W2 + 2, 6: Z2 + 2, 7: w + 4}
        for c in range(8):
            a.lg(f'ds_write_b128 v5, {vr(src[c],4)} offset:{ch*HC + c*CS}')
        if ch == 0: a.wait_all(vm=False)
    a(f'v_add_u32 v5, {UB+480}, v3')
    for ch in range(2):
        a.wait(vm=tu[ch])
        a.lg(f'ds_write_b128 v5, {vr(32+4*ch,4)} offset:{ch*US}')
    a('s_lshr_b32 s7, s3, 1\ns_and_b32 s8, s3, 1')
    a('v_and_b32 v6, 15, v2\nv_lshrrev_b32 v7, 4, v2')
    a(f'v_and_b32 v8, 7, v6\nv_mul_u32_u24 v8, {CS}, v8\nv_lshrrev_b32 v9, 3, v6\nv_add_u32 v9, v9, v7\nv_lshl_add_u32 v8, v9, 4, v8')
    a(f's_mul_i32 s9, s7, {HC}\ns_lshl_b32 s10, s8, 8\ns_add_u32 s9, s9, s10\nv_add_u32 v8, s9, v8')
    a('v_lshlrev_b32 v9, 1, v6\nv_sub_u32 v9, v9, v7\nv_add_u32 v9, 19, v9\nv_lshlrev_b32 v9, 4, v9')
    a(f's_mul_i32 s9, s7, {US}\ns_add_u32 s9, s9, {UB}\ns_sub_u32 s9, s9, s10\nv_add_u32 v9, s9, v9')
    a.wait_all(vm=False)
    a('s_barrier')
    FA = [80, 144]; ACC = 208
    def rd(rr):
        ops = []
        for n in range(8):
            base = FA[rr & 1]
            ops.append(f'ds_read_b128 {vr(base+4*n,4)}, v8 offset:{(8*n+rr)*64}')
            ops.append(f'ds_read_b128 {vr(base+32+4*n,4)}, v9 offset:{(8*n+3-rr)*64}')
        return ops
    tr = {0: [a.lg(o) for o in rd(0)]}
    for rr in range(4):
        nxt = rd(rr + 1) if rr < 3 else []
        tr[rr + 1] = []
        base = FA[rr & 1]
        pairs = sorted([(ip, n) for ip in range(8) for n in range(8) if ip + n < 8], key=lambda x: (max(x), x))
        seen = set()
        for idx, (ip, n) in enumerate(pairs):
            t = ip + n
            a.wait(lg=max(tr[rr][2 * ip], tr[rr][2 * n + 1]))
            c = '0' if (rr == 0 and t not in seen) else vr(ACC + 4 * t, 4)
            seen.add(t)
            a(f'v_mfma_f32_16x16x32_bf16 {vr(ACC+4*t,4)}, {vr(base+4*ip,4)}, {vr(base+32+4*n,4)}, {c}')
            if idx >= 2 and idx % 2 == 0 and nxt: tr[rr + 1].append(a.lg(nxt.pop(0)))
        assert not nxt
    a(f'v_lshlrev_b32 v5, 4, v2\ns_lshl_b32 s9, s3, 13\ns_add_u32 s9, s9, {RB_}\nv_add_u32 v5, s9, v5')
    for t in range(8): a.lg(f'ds_write_b128 v5, {vr(ACC+4*t,4)} offset:{t*1024}')
    a('v_and_b32 v6, 127, v0\nv_lshrrev_b32 v7, 5, v6\nv_bfe_u32 v10, v6, 1, 4\nv_and_b32 v11, 1, v6')
    a('v_lshlrev_b32 v7, 10, v7\nv_lshl_add_u32 v7, v10, 4, v7\nv_lshl_add_u32 v7, v11, 9, v7')
    a(f's_lshl_b32 s9, s7, 14\ns_add_u32 s9, s9, {RB_}\nv_add_u32 v7, s9, v7')
    a(f's_mul_i32 s9, s7, {US}\ns_add_u32 s9, s9, {UB+480}\nv_lshlrev_b32 v6, 4, v6\nv_add_u32 v10, s9, v6')
    a.wait_all(vm=False)
    a('s_barrier')
    for k in range(2):
        for p in range(2):
            for h in range(2):
                a.lg(f'ds_read_b128 {vr(16+32*k+8*p+4*h,4)}, v7 offset:{k*4096 + p*8192 + h*256}')
        a.lg(f'ds_read_b128 {vr(32+32*k,4)}, v10 offset:{k*2048}')
    a.wait(vm=tD)
    a('s_cmp_eq_u32 s7, 0\ns_cselect_b32 s9, 16, 0\ns_mov_b32 s8, 0xffff0000')
    a('v_lshlrev_b32 v15, s9, v15\nv_and_b32 v15, s8, v15')
    a(f's_lshl_b32 s9, s7, 12\ns_add_u32 s9, s9, s4\ns_add_u32 s9, s9, {WS_YT}')
    a.wait_all(vm=False)
    for k in range(2):
        b = 16 + 32 * k
        for e in range(8): a(f'v_add_f32 v{b+e}, v{b+e}, v{b+8+e}')
        for e in range(8):
            ee = 7 - e
            if ee & 1: a(f'v_and_b32 v{b+8+e}, s8, v{b+16+ee//2}')
            else: a(f'v_lshlrev_b32 v{b+8+e}, 16, v{b+16+ee//2}')
            a(f'v_fmac_f32 v{b+e}, v{b+8+e}, v15')
        for j in range(4): a(f'v_cvt_pk_bf16_f32 v{b+20+j}, v{b+2*j}, v{b+2*j+1}')
        a.vm(f'buffer_store_dwordx4 {vr(b+20,4)}, v6, s[52:55], s9 offen offset:{k*2048} sc1')
    a.wait_all()
    a('L_cv_end:\ns_endpgm')
    return a

def k_gemm2():
    a = Asm(); a.endl = 'L_g2_end'; a.helper = 'L_g2_end'
    prologue(a, 256)
    decode_role(a)
    a('v_lshlrev_b32 v3, 4, v2')
    a('s_lshl_b32 s4, s64, 1\ns_add_u32 s69, s4, s67')
    a(f's_mul_i32 s5, s69, {112*2048}')
    a(f's_mul_i32 s6, s66, {112*2048}\ns_add_u32 s6, s6, {WS_WDT}')
    a('s_waitcnt lgkmcnt(0)')
    a.srd(44, P_WS, 112 * 2048, add='s5')
    a.srd(48, P_WS, 112 * 2048, add='s6')
    a.srd(52, P_WS, WS_END); a.srd(56, P_Q, XB); a.srd(60, P_OUT, XB)
    a('s_lshl_b32 s7, s68, 15\ns_lshl_b32 s8, s3, 11\ns_add_u32 s7, s7, s8')
    NB = 14
    def buf(i):
        return (i % NB) * 16
    tl = {}
    def load(i):
        st = i // 14
        b = buf(i)
        a(f's_add_u32 s9, s7, {st*4*2048}')
        a.vm(f'buffer_load_dwordx4 {ar(b,4)}, v3, s[48:51], s9 offen')
        a.vm(f'buffer_load_dwordx4 {ar(b+4,4)}, v3, s[48:51], s9 offen offset:1024')
        a.vm(f'buffer_load_dwordx4 {ar(b+8,4)}, v3, s[44:47], s9 offen sc1')
        tl[i] = a.vm(f'buffer_load_dwordx4 {ar(b+12,4)}, v3, s[44:47], s9 offen offset:1024 sc1')
        a(f's_add_u32 s7, s7, {8*2048}\ns_cmp_ge_u32 s7, {112*2048}\ns_cselect_b32 s8, {112*2048}, 0\ns_sub_u32 s7, s7, s8')
    a('v_lshrrev_b32 v4, 3, v0\nv_and_b32 v5, 7, v0')
    a('v_lshlrev_b32 v6, 12, v4\nv_lshl_add_u32 v6, v5, 4, v6')
    a(f's_lshl_b32 s10, s66, 18\ns_lshl_b32 s11, s69, 7\ns_add_u32 s10, s10, s11\ns_add_u32 s10, s10, {WS_YT}')
    a('s_add_u32 s11, s10, 0x20000')
    ty0 = a.vm('buffer_load_dwordx4 v[16:19], v6, s[52:55], s10 offen sc1')
    ty1 = a.vm('buffer_load_dwordx4 v[20:23], v6, s[52:55], s11 offen sc1')
    a('v_mul_u32_u24 v7, 896, v4\nv_lshl_add_u32 v7, v5, 4, v7')
    a(f's_mul_i32 s12, s69, {64*896}\ns_lshl_b32 s13, s66, 7\ns_add_u32 s12, s12, s13\ns_add_u32 s13, s12, {32*896}')
    tx0 = a.vm('buffer_load_dwordx4 v[24:27], v7, s[56:59], s12 offen')
    tx1 = a.vm('buffer_load_dwordx4 v[28:31], v7, s[56:59], s13 offen')
    a('s_and_b32 s14, s3, 1\ns_lshr_b32 s15, s3, 1')
    a('v_and_b32 v8, 31, v2\nv_lshlrev_b32 v9, 3, v8')
    a(f's_lshl_b32 s10, s69, 9\ns_lshl_b32 s11, s15, 8\ns_add_u32 s10, s10, s11\ns_add_u32 s10, s10, {WS_ST}')
    ts = a.vm('buffer_load_dwordx2 v[12:13], v9, s[52:55], s10 offen')
    for i in range(NB - 1): load(i)
    YL, XL, RL = 0, 9216, 20480
    a('v_mul_u32_u24 v9, 144, v4\nv_lshl_add_u32 v9, v5, 4, v9')
    a.wait(vm=tx1)
    a.lg(f'ds_write_b128 v9, v[16:19] offset:{YL}')
    a.lg(f'ds_write_b128 v9, v[20:23] offset:{YL+32*144}')
    a.lg(f'ds_write_b128 v9, v[24:27] offset:{XL}')
    a.lg(f'ds_write_b128 v9, v[28:31] offset:{XL+32*144}')
    a.wait_all(vm=False)
    a('s_barrier')
    a('v_lshrrev_b32 v10, 5, v2\nv_bfe_u32 v11, v2, 2, 2\nv_lshl_add_u32 v11, v10, 2, v11\nv_mul_u32_u24 v11, 144, v11')
    a('v_bfe_u32 v14, v2, 4, 1\nv_lshl_add_u32 v11, v14, 5, v11\nv_and_b32 v14, 3, v2\nv_lshl_add_u32 v11, v14, 3, v11')
    a(f's_mul_i32 s10, s14, {32*144}\ns_lshl_b32 s11, s15, 6\ns_add_u32 s10, s10, s11\nv_add_u32 v11, s10, v11')
    for q in range(4): a.lg(f'ds_read_b64_tr_b16 {vr(16+2*q,2)}, v11 offset:{YL+q*8*144}')
    a('v_mul_u32_u24 v14, 144, v8\nv_lshl_add_u32 v14, v10, 3, v14')
    a(f's_mul_i32 s10, s15, {32*144}\ns_lshl_b32 s11, s14, 6\ns_add_u32 s10, s10, s11\nv_add_u32 v14, s10, v14')
    for q in range(4): a.lg(f'ds_read_b64 {vr(24+2*q,2)}, v14 offset:{XL+q*16}')
    a.wait(vm=ts); a.wait_all(vm=False)
    a('s_mov_b32 s10, 0xffff0000')
    E = 32
    for q in range(4):
        for e in range(4):
            xs, ys = 24 + 2 * q + (e >> 1), 16 + 2 * q + (e >> 1)
            if e & 1: a(f'v_and_b32 v48, s10, v{xs}\nv_and_b32 v49, s10, v{ys}')
            else: a(f'v_lshlrev_b32 v48, 16, v{xs}\nv_lshlrev_b32 v49, 16, v{ys}')
            a('v_sub_f32 v50, v48, v12\nv_mul_f32 v50, v50, v13')
            a(f'v_fma_f32 v{E+4*q+e}, v50, v49, v48')
    ACC = 64
    for i in range(28):
        if i + NB - 1 < 28: load(i + NB - 1)
        a.wait(vm=tl[i])
        b = buf(i)
        for st in range(2):
            for dt in range(2):
                acc = vr(ACC + 16 * (2 * st + dt), 16)
                a(f'v_mfma_f32_32x32x16_bf16 {acc}, {ar(b+4*dt,4)}, {ar(b+8+4*st,4)}, {"0" if i == 0 else acc}')
    PR = 272; PW = 64 * PR
    a(f'v_mul_u32_u24 v14, {PR}, v8\nv_lshl_add_u32 v14, v10, 4, v14')
    a(f's_mul_i32 s10, s3, {PW}\ns_add_u32 s10, s10, {RL}\nv_add_u32 v11, s10, v14')
    a(f's_mul_i32 s10, s15, {32*PR}\ns_lshl_b32 s11, s14, 7\ns_add_u32 s10, s10, s11\ns_add_u32 s10, s10, {RL+4*PW}\nv_add_u32 v15, s10, v14')
    for q in range(4): a.lg(f'ds_write_b128 v15, {vr(E+4*q,4)} offset:{q*32}')
    for st in range(2):
        for dt in range(2):
            for q in range(4):
                a.lg(f'ds_write_b128 v11, {vr(ACC+16*(2*st+dt)+4*q,4)} offset:{st*32*PR + dt*128 + q*32}')
    a(f'v_mul_u32_u24 v14, {PR}, v4\nv_lshl_add_u32 v14, v5, 5, v14\nv_add_u32 v14, {RL}, v14\nv_add_u32 v15, {3*PW}, v14')
    a.wait_all(vm=False)
    a('s_barrier')
    for k in range(2):
        b = 128 + 48 * k
        tt = []
        for p in range(5):
            for h in range(2):
                ad, off = ('v14', p * PW) if p < 3 else ('v15', (p - 3) * PW)
                tt.append(a.lg(f'ds_read_b128 {vr(b+8*p+4*h,4)}, {ad} offset:{off + k*32*PR + h*16}'))
        a.wait(lg=tt[-1])
        for e in range(8):
            a(f'v_add_f32 v{b+e}, v{b+e}, v{b+8+e}\nv_add_f32 v{b+16+e}, v{b+16+e}, v{b+24+e}')
        for e in range(8):
            a(f'v_add_f32 v{b+e}, v{b+e}, v{b+16+e}')
        for e in range(8):
            a(f'v_add_f32 v{b+e}, v{b+e}, v{b+32+e}')
        for j in range(4): a(f'v_cvt_pk_bf16_f32 v{b+40+j}, v{b+2*j}, v{b+2*j+1}')
        a.vm(f'buffer_store_dwordx4 {vr(b+40,4)}, v7, s[60:63], s{12+k} offen')
    a.wait_all()
    a('L_g2_end:\ns_endpgm')
    return a

def build(path):
    ks = [('prep_kernel', k_prep(), 32, 57344 * 2 + 8192), ('gemm1_kernel', k_gemm1(), 256, 163840),
          ('conv_kernel', k_conv(), 224, RB_ + 32768), ('gemm2_kernel', k_gemm2(), 256, 20480 + 5 * 17408)]
    out = HEADER
    for n, a, g, lds in ks: out += f'; @launch kernel={n} grid=({g},1,1) block=(256,1,1) lds={lds}\n'
    out += '.amdgcn_target "amdgcn-amd-amdhsa--gfx950"\n.text\n'
    for n, a, g, lds in ks:
        t, nn = a.text()
        print(n, 'instrs', len(a.L), 'nops inserted', nn)
        out += kernel_text(n, t)
    out += '.section .rodata,"a"\n'
    for n, a, g, lds in ks: out += kd_text(n, 512, 256)
    open(path, 'w').write(out)

if __name__ == '__main__':
    import sys
    build(sys.argv[1] if len(sys.argv) > 1 else 'v1.s')
```

```python
import re

REG_RE = re.compile(r'\b([vas])(?:(\d+)\b|\[(\d+):(\d+)\])')

def regs_of(op):
    out = set()
    op = op.strip()
    if op in ('vcc',): return {('s', 106), ('s', 107)}
    if op == 'vcc_lo': return {('s', 106)}
    if op == 'vcc_hi': return {('s', 107)}
    if op == 'exec': return {('s', 126), ('s', 127)}
    if op == 'm0': return {('s', 124)}
    for m in REG_RE.finditer(op):
        f = m.group(1)
        if m.group(2) is not None: out.add((f, int(m.group(2))))
        else:
            for i in range(int(m.group(3)), int(m.group(4)) + 1): out.add((f, i))
    return out

def split_ops(s):
    ops, depth, cur = [], 0, ''
    for ch in s:
        if ch in '[(': depth += 1
        if ch in '])': depth -= 1
        if ch == ',' and depth == 0:
            ops.append(cur.strip()); cur = ''
        else: cur += ch
    if cur.strip(): ops.append(cur.strip())
    return ops

TRANS = ('v_exp_f32', 'v_log_f32', 'v_rcp_f32', 'v_rsq_f32', 'v_sqrt_f32', 'v_sin_f32', 'v_cos_f32', 'v_rcp_iflag_f32')

class Ins:
    __slots__ = ('text', 'mn', 'cls', 'dst', 'src', 'passes', 'srcc', 'srcab', 'storedata', 'states', 'mods')
    def __init__(self, text):
        self.text = text
        t = text.split(';')[0].strip()
        self.dst, self.src, self.srcc, self.srcab, self.storedata = set(), set(), set(), set(), set()
        self.passes = 0; self.states = 1; self.mods = ''
        if not t or t.endswith(':') or t.startswith('.'):
            self.mn = ''; self.cls = 'label' if t.endswith(':') else 'none'; self.states = 0; return
        parts = t.split(None, 1)
        mn = self.mn = parts[0]
        rest = parts[1] if len(parts) > 1 else ''
        ops = split_ops(rest)
        if ops:
            last = ops[-1]
            sp = re.match(r'^(\S+(?:\[[^\]]*\])?)\s*(.*)$', last)
            if sp and not last.startswith('hwreg') and not mn.startswith('s_waitcnt'):
                ops[-1] = sp.group(1); self.mods = sp.group(2)
        R = [regs_of(o) for o in ops]
        if mn == 's_nop':
            self.cls = 'salu'; self.states = int(ops[0], 0) + 1
        elif mn.startswith('v_mfma'):
            self.cls = 'mfma'
            self.passes = 8 if '32x32x16' in mn else 4 if '16x16x32' in mn else None
            assert self.passes, mn
            self.dst = R[0]; self.srcab = R[1] | R[2]; self.srcc = R[3]; self.src = self.srcab | self.srcc
        elif mn.startswith('v_'):
            self.cls = 'valu'
            if mn.startswith('v_cmp'):
                self.dst = R[0]; self.src = set().union(*R[1:])
            elif mn.startswith(('v_add_co', 'v_sub_co', 'v_addc_co', 'v_subb_co')):
                self.dst = R[0] | R[1]; self.src = set().union(*R[2:])
            elif mn.startswith('v_permlane') and 'swap' in mn:
                self.dst = R[0] | R[1]; self.src = R[0] | R[1]
            else:
                self.dst = R[0]; self.src = set().union(*R[1:]) if len(R) > 1 else set()
                if mn.startswith(('v_fmac', 'v_dot2c', 'v_pk_fmac', 'v_writelane')) or 'dst_unused:UNUSED_PRESERVE' in t or '_dpp' in mn:
                    self.src |= R[0]
                if mn.startswith('v_cndmask') and len(R) == 3: self.src |= regs_of('vcc')
        elif mn.startswith(('buffer_', 'global_')):
            self.cls = 'vmem'
            if mn in ('buffer_inv', 'buffer_wbl2'): pass
            elif 'store' in mn or 'atomic' in mn:
                self.src = set().union(*R)
                data = R[0] if mn.startswith('buffer_') else R[1]
                if 'x4' in mn or 'x3' in mn: self.storedata = data
                if 'atomic' in mn and 'sc0' in self.mods: self.dst = R[0]
            elif ' lds' in (' ' + self.mods) or '_lds_' in mn:
                self.src = set().union(*R) | regs_of('m0')
            else:
                self.dst = R[0]; self.src = set().union(*R[1:])
        elif mn.startswith('ds_'):
            self.cls = 'ds'
            if 'write' in mn: self.src = set().union(*R)
            else: self.dst = R[0]; self.src = set().union(*R[1:])
        elif mn.startswith('s_'):
            self.cls = 'salu'
            if mn.startswith(('s_cmp', 's_cbranch', 's_branch', 's_waitcnt', 's_barrier', 's_endpgm', 's_sleep', 's_setprio')):
                self.src = set().union(*R) if R else set()
            else:
                self.dst = R[0] if R else set(); self.src = set().union(*R[1:]) if len(R) > 1 else set()
                if 'saveexec' in mn: self.dst |= regs_of('exec')
        else:
            raise ValueError('unknown instr ' + t)

def need_states(p, c):
    n = 0
    vec = lambda s: {r for r in s if r[0] in 'va'}
    sc = lambda s: {r for r in s if r[0] == 's'}
    if p.cls == 'valu':
        pv, ps = vec(p.dst), sc(p.dst)
        if c.cls == 'mfma' and pv & c.src: n = max(n, 2)
        if c.cls == 'vmem' and ps & c.src: n = max(n, 5)
        if c.cls == 'valu':
            if ps & c.src: n = max(n, 4 if c.mn.startswith(('v_readlane', 'v_writelane')) else 2)
            if pv & c.src:
                if c.mn.startswith(('v_readlane', 'v_readfirstlane')): n = max(n, 1)
                if '_dpp' in c.mn or c.mn.startswith('v_permlane'): n = max(n, 2)
                if p.mn in TRANS or p.mn.replace('_e32', '').replace('_e64', '') in TRANS: n = max(n, 1)
                if '_sdwa' in p.mn or 'op_sel' in p.mods: n = max(n, 1)
            if p.mn.startswith('v_dot') and pv & (c.src | c.dst):
                n = max(n, 3)
                if c.mn == p.mn and p.mn.startswith('v_dot2c') and not (pv & (c.src - c.dst)): n = 0 if n == 3 else n
        if p.mn.startswith('v_dot') and c.cls in ('mfma', 'vmem', 'ds') and pv & c.src: n = max(n, 3)
        if c.cls == 'salu' and ps & c.src: n = max(n, 1)
    if p.cls == 'mfma':
        big = {4: 8, 8: 12}[p.passes]; ovl = {4: 6, 8: 10}[p.passes]; war = {4: 3, 8: 7}[p.passes]
        if c.cls == 'mfma':
            if p.dst & c.srcab: n = max(n, big)
            if p.dst & c.srcc and not (p.dst == c.srcc and p.passes == c.passes): n = max(n, ovl)
            if p.dst & c.dst and not (p.dst == c.dst and p.passes == c.passes): n = max(n, ovl)
        elif c.cls in ('valu', 'vmem', 'ds'):
            if p.dst & (c.src | c.dst): n = max(n, big)
            if c.cls == 'valu' and p.srcc & c.dst: n = max(n, war)
    if p.cls == 'salu' and ('s', 124) in p.dst and c.cls == 'vmem' and ('s', 124) in c.src: n = max(n, 1)
    if p.cls == 'vmem' and p.storedata and p.storedata & c.dst: n = max(n, 2 if c.cls == 'valu' else 1)
    return n

def fix_hazards(lines):
    out = []
    nins = 0
    for t in lines:
        c = Ins(t)
        if c.states:
            dist = 0; pad = 0
            for p in reversed(out):
                if dist >= 20: break
                if p.states == 0: continue
                need = need_states(p, c)
                if need > dist: pad = max(pad, need - dist)
                dist += p.states
            while pad > 0:
                k = min(pad, 16)
                out.append(Ins(f's_nop {k-1}')); pad -= k; nins += 1
        out.append(c)
    return [i.text for i in out], nins

class Asm:
    def __init__(self):
        self.L = []
        self.vm_n = 0; self.vm_done = 0
        self.lg_n = 0; self.lg_done = 0
    def __call__(self, s):
        for l in s.split('\n'):
            if l.strip(): self.L.append(l.strip())
    def vm(self, s):
        self(s); self.vm_n += 1; return self.vm_n
    def lg(self, s):
        self(s); self.lg_n += 1; return self.lg_n
    def wait(self, vm=None, lg=None):
        parts = []
        if vm is not None and vm > self.vm_done:
            n = self.vm_n - vm
            if n <= 63:
                parts.append(f'vmcnt({n})')
            else:
                parts.append('vmcnt(63)'); vm = self.vm_n - 63
            self.vm_done = vm
        if lg is not None and lg > self.lg_done:
            n = self.lg_n - lg
            if n <= 15:
                parts.append(f'lgkmcnt({n})')
            else:
                parts.append('lgkmcnt(15)'); lg = self.lg_n - 15
            self.lg_done = lg
        if parts: self('s_waitcnt ' + ' '.join(parts))
    def wait_all(self, vm=True, lg=True):
        parts = []
        if vm: parts.append('vmcnt(0)'); self.vm_done = self.vm_n
        if lg: parts.append('lgkmcnt(0)'); self.lg_done = self.lg_n
        self('s_waitcnt ' + ' '.join(parts))
    def srd(self, d, lo, nbytes, add=None):
        if add is None:
            self(f's_mov_b32 s{d}, s{lo}\ns_mov_b32 s{d+1}, s{lo+1}')
        else:
            self(f's_add_u32 s{d}, s{lo}, {add}\ns_addc_u32 s{d+1}, s{lo+1}, 0')
        self(f's_mov_b32 s{d+2}, {nbytes}\ns_mov_b32 s{d+3}, 0x00020000')
    STAMP_SG = {0: 92, 1: 93, 2: 94, 3: 95, 4: 70, 5: 71, 6: 72, 7: 73, 8: 74, 9: 75, 10: 76, 15: 96}
    def stamp(self, i):
        if not getattr(self, 'stamps', False): return
        self('s_memrealtime s[98:99]')
        self('s_waitcnt lgkmcnt(0)'); self.lg_done = self.lg_n
        self(f's_mov_b32 s{self.STAMP_SG[i]}, s98')
        self.used_stamps = getattr(self, 'used_stamps', set()) | {i}
    def stamp_flush(self, kidx, ws_lo, off, which=None):
        if not getattr(self, 'stamps', False): return
        self('v_mov_b32 v16, 0')
        for i in sorted(which or self.used_stamps):
            self(f'v_writelane_b32 v16, s{self.STAMP_SG[i]}, {i}')
        self(f's_add_u32 s92, s{ws_lo}, {off}\ns_addc_u32 s93, s{ws_lo+1}, 0\ns_mov_b32 s94, 0x100000\ns_mov_b32 s95, 0x00020000')
        self(f's_add_u32 s96, s2, {kidx*256}\ns_lshl_b32 s96, s96, 2\ns_add_u32 s96, s96, s3\ns_lshl_b32 s96, s96, 6')
        self('v_mbcnt_lo_u32_b32 v17, -1, 0\nv_mbcnt_hi_u32_b32 v17, -1, v17\nv_lshlrev_b32 v17, 2, v17')
        self('s_mov_b64 exec, 0xffff')
        self('buffer_store_dword v16, v17, s[92:95], s96 offen')
        self('s_waitcnt vmcnt(0)')
    def text(self):
        lines, n = fix_hazards(self.L)
        return '\n'.join(('' if l.endswith(':') else '    ') + l for l in lines), n

def vr(a, n=1, f='v'):
    return f'{f}{a}' if n == 1 else f'{f}[{a}:{a+n-1}]'
def ar(a, n=1): return vr(a, n, 'a')
def sr(a, n=1): return vr(a, n, 's')

HEADER = '''; Kernarg layout (104 bytes, ptrs only, base s[0:1]): q,k,v,shift_k,ssm_k,ssm_D,B_x,w_gate,w_up,w_down,out,debug,ws
'''
def kernel_text(name, body):
    return f'''.globl {name}
.p2align 8
.type {name},@function
{name}:
{body}
'''
def kd_text(name, vgpr, accum, sgpr=102):
    return f'''.p2align 6
.amdhsa_kernel {name}
  .amdhsa_next_free_vgpr {vgpr}
  .amdhsa_next_free_sgpr {sgpr}
  .amdhsa_accum_offset {accum}
  .amdhsa_group_segment_fixed_size 0
  .amdhsa_kernarg_size 104
  .amdhsa_user_sgpr_count 2
  .amdhsa_user_sgpr_kernarg_segment_ptr 1
  .amdhsa_system_sgpr_workgroup_id_x 1
.end_amdhsa_kernel
'''
```

```python
from asmfw import *
from collections import deque
import struct, sys
KN = "parallel_sum__ssm_conv_h3__glu_gated_bilinear__prompt"
S, D, F = 2048, 448, 1792
WS_H = 0
WS_WDT = 0x700000
WS_KVT = WS_WDT + 7 * 112 * 2048
WS_YT = WS_KVT + 448 * 4096
WS_FL = WS_YT + 448 * 4096
FL1 = WS_FL
FL2 = FL1 + 28 * 256
FL3 = FL2 + 4 * 256
FL4 = FL3 + 64 * 256
WS_END = FL4 + 14 * 512
WS_STAMP = 0x1000000
XB = S * D * 2
WB = D * F * 2
P_Q, P_K, P_V, P_SH, P_SSM, P_SD, P_BX, P_WG = 16, 18, 20, 22, 24, 26, 28, 30
P_WU, P_WD, P_OUT, P_DBG, P_WS = 32, 34, 36, 38, 40
def f32(x): return hex(struct.unpack('<I', struct.pack('<f', x))[0])

TAG = 42
sX, sW, sWS, sH, sWD, sT0, sT1 = 44, 48, 52, 56, 60, 84, 88
RB, CB, CBL, HALF, ROT, ROW64 = 64, 65, 66, 67, 68, 69
XG, WG_ = 70, 77
KF = 16
sMASK = 15
sLW = 14
sHST = 13
sPI = 12
VL16, VL0, VTAG = 3, 4, 6
XF, ACCB = 16, 128
VA, VX, VXD, VW = 192, 200, 204, 208
VSEL, VSUM, CSUM, VSS = 212, 216, 220, 224
VM, VR, VR2 = 228, 229, 230
VT = 232
ACCA, WF = 0, 64
SLOT = 16384
def xslot(i): return (i % 3) * SLOT
def wslot(q): return SLOT * ([3, 4, 5, 3, 4, 5, 3, 6, 7, 8, 9, 4, 5, 3][q])
KVX = 9 * SLOT
CS = 4160; HC = 8 * CS
TZ = [0, 6 * SLOT]
UB = HC; US = 4608
CSX = 43008; STL = 47104
CRED = 3 * SLOT
YXL = 5 * SLOT
PR = 272; PWH = 32 * PR
PRED = [102400, 0]
EB = PRED[0] + 4 * PWH

SPIN_MAX = 200000
class G(Asm):
    def fill(self, q, n):
        while n > 0 and q:
            it = q[0]
            if isinstance(it, str):
                if it in self.open: q.popleft(); continue
                return
            q.popleft()
            r = it()
            n -= (r if isinstance(r, float) else 1)
    def drain(self, q):
        while q:
            it = q.popleft()
            if isinstance(it, str): assert it in self.open, it
            else: it()

def I(a, s): return lambda: a(s)

def poll_check(a, tok, reg, relaunch, name):
    a.wait(vm=tok)
    a(f'L_{name}_chk:')
    a(f'v_cmp_ne_u64 vcc, {sr(TAG,2)}, {vr(reg,2)}')
    a('s_nop 1')
    a('s_cmp_eq_u64 vcc, 0')
    a(f's_cbranch_scc1 L_{name}_ok')
    a(f's_add_u32 s100, s100, 1\ns_cmp_gt_u32 s100, {SPIN_MAX}\ns_cbranch_scc1 L_{name}_ok')
    a('s_sleep 1')
    a(relaunch)
    a('s_waitcnt vmcnt(0)')
    a(f's_branch L_{name}_chk')
    a(f'L_{name}_ok:')

def tag_get(a, tok, reg, relaunch, name):
    a.wait(vm=tok)
    a(f'L_{name}_chk:')
    a(f'v_readfirstlane_b32 s{TAG}, v{reg}\nv_readfirstlane_b32 s{TAG+1}, v{reg+1}')
    a('s_nop 1')
    a(f's_cmp_lg_u32 s{TAG+1}, 0')
    a(f's_cbranch_scc1 L_{name}_ok')
    a(f's_add_u32 s100, s100, 1\ns_cmp_gt_u32 s100, {SPIN_MAX}\ns_cbranch_scc1 L_{name}_ok')
    a('s_sleep 1')
    a(relaunch)
    a('s_waitcnt vmcnt(0)')
    a(f's_branch L_{name}_chk')
    a(f'L_{name}_ok:')

def gen(stamps=False):
    a = G(); a.stamps = stamps; a.open = set()
    a('s_cmp_ge_u32 s2, 256\ns_cbranch_scc1 L_end')
    a.stamp(0)
    a('s_load_dwordx16 s[16:31], s[0:1], 0')
    a('s_load_dwordx8 s[32:39], s[0:1], 64')
    a('s_load_dwordx2 s[40:41], s[0:1], 96')
    a('s_memrealtime s[10:11]')
    a('s_getpc_b64 s[8:9]')
    a('L_pc:')
    a('v_lshrrev_b32 v1, 6, v0\nv_and_b32 v2, 63, v0\nv_readfirstlane_b32 s3, v1')
    a(f'v_lshlrev_b32 v{VL16}, 4, v2')
    a(f'v_cmp_eq_u32 vcc, 0, v2\nv_bfrev_b32 v5, 1\nv_cndmask_b32 v{VL0}, v5, 0, vcc')
    a('s_and_b32 s4, s2, 7\ns_lshr_b32 s5, s2, 3\ns_mov_b32 s100, 0')
    a('s_lshl_b32 s6, s5, 2\ns_add_u32 s6, s6, s3\ns_lshl_b32 s6, s6, 9')
    a('v_and_b32 v5, 3, v2\nv_lshlrev_b32 v5, 7, v5\nv_add_u32 v5, s6, v5\nv_min_u32 v5, L_end-L_pc, v5')
    a.vm('global_load_dword v16, v5, s[8:9]')
    a(f's_mov_b32 s{sMASK}, 0xffff0000\ns_lshl_b32 s{sLW}, s3, 12')
    a('s_cmp_ge_u32 s5, 28\ns_cbranch_scc1 L_helper')
    a('s_mul_i32 s6, s5, 37\ns_lshr_b32 s6, s6, 8')
    a(f's_mul_i32 s7, s6, 7\ns_sub_u32 s{CBL}, s5, s7')
    a(f's_lshr_b32 s7, s4, 1\ns_lshl_b32 s7, s7, 2\ns_add_u32 s{RB}, s7, s6')
    a(f's_and_b32 s{HALF}, s4, 1\ns_mul_i32 s7, s{HALF}, 7\ns_add_u32 s{CB}, s7, s{CBL}')
    a(f's_lshl_b32 s7, s6, 1\ns_add_u32 s{ROT}, s7, s{CBL}')
    a(f's_cmp_ge_u32 s{ROT}, 7\ns_cselect_b32 s7, 7, 0\ns_sub_u32 s{ROT}, s{ROT}, s7')
    a(f's_lshl_b32 s7, s{RB}, 1\ns_add_u32 s{ROW64}, s7, s{HALF}')
    a('v_and_b32 v13, 31, v2\nv_lshrrev_b32 v14, 5, v2')
    a(f's_lshl_b32 s6, s{ROW64}, 3\ns_lshl_b32 s7, s3, 1\ns_add_u32 s6, s6, s7\ns_mul_i32 s6, s6, {8*896}')
    a(f's_lshl_b32 s7, s{CBL}, 7\ns_add_u32 s6, s6, s7')
    a(f'v_mul_u32_u24 v9, {8*896}, v14\nv_lshl_add_u32 v9, v13, 2, v9\nv_add_u32 v9, s6, v9')
    a(f'v_add_u32 v10, {5*896}, v9\nv_subrev_u32 v11, {3*896}, v9')
    a(f's_lshl_b32 s7, s{CBL}, 9\nv_lshlrev_b32 v12, 4, v13\nv_add_u32 v12, s7, v12')
    a('v_lshrrev_b32 v15, 3, v2\nv_and_b32 v1, 7, v2\nv_lshrrev_b32 v5, 1, v15\nv_xor_b32 v5, v5, v1')
    a(f'v_mul_u32_u24 v{VXD}, 896, v15\nv_lshl_add_u32 v{VXD}, v5, 4, v{VXD}')
    a(f'v_xor_b32 v{VXD+1}, 64, v{VXD}\nv_add_u32 v{VXD+1}, {7168-1024}, v{VXD+1}')
    a(f'v_add_u32 v{VXD+2}, {2*(7168-1024)}, v{VXD}\nv_add_u32 v{VXD+3}, {2*(7168-1024)}, v{VXD+1}')
    a('s_and_b32 s4, s3, 1\ns_lshr_b32 s5, s3, 1\ns_lshl_b32 s5, s5, 3\ns_lshl_b32 s6, s4, 2')
    a('v_bfe_u32 v5, v15, 1, 1\nv_lshlrev_b32 v5, 1, v5\nv_or_b32 v5, s6, v5\nv_xor_b32 v5, v5, v1')
    a(f'v_add_u32 v{VW}, s5, v15\nv_mul_u32_u24 v{VW}, 3584, v{VW}\nv_lshl_add_u32 v{VW}, v5, 4, v{VW}')
    for ks in range(1, 4): a(f'v_add_u32 v{VW+ks}, {ks*(16*3584-1024)}, v{VW}')
    a(f's_lshl_b32 s6, s{RB}, 2\ns_add_u32 s6, s6, s3\ns_mul_i32 s6, s6, 28672\ns_lshl_b32 s7, s{CB}, 8')
    for i in range(7):
        a(f's_add_u32 s5, s{ROT}, {i}\ns_cmp_ge_u32 s5, 7\ns_cselect_b32 s{sHST}, 7, 0\ns_sub_u32 s5, s5, s{sHST}')
        a(f's_lshl_b32 s{XG+i}, s5, 7\ns_add_u32 s{XG+i}, s{XG+i}, s6')
        a(f's_mul_i32 s{WG_+i}, s5, {64*3584}\ns_add_u32 s{WG_+i}, s{WG_+i}, s7')
    a('s_waitcnt lgkmcnt(0)')
    a.srd(sT0, P_K, XB); a.srd(sT1, P_V, XB); a.srd(sH, P_SH, 448 * 8)
    KR, VRAW, SHR = 128, 140, 148
    tsh = a.vm(f'buffer_load_dwordx4 {vr(SHR,4)}, v12, {sr(sH,4)}, 0 offen')
    tk = []
    for i in range(3): tk.append(a.vm(f'buffer_load_dword v{KR+i}, v11, {sr(sT0,4)}, 0 offen offset:{i*896}'))
    tv = []
    for i in range(8):
        ad, off = ('v9', i * 896) if i < 5 else ('v10', (i - 5) * 896)
        tk.append(a.vm(f'buffer_load_dword v{KR+3+i}, {ad}, {sr(sT0,4)}, 0 offen offset:{off}'))
        tv.append(a.vm(f'buffer_load_dword v{VRAW+i}, {ad}, {sr(sT1,4)}, 0 offen offset:{off}'))
    a.srd(sX, P_Q, XB)
    a('s_cmp_eq_u32 s4, 0')
    a(f's_cselect_b32 s{sW}, s{P_WG}, s{P_WU}\ns_cselect_b32 s{sW+1}, s{P_WG+1}, s{P_WU+1}\ns_mov_b32 s{sW+2}, {WB}\ns_mov_b32 s{sW+3}, 0x00020000')
    tx, tw = {}, {}
    def xdma(i, rg):
        def f():
            if rg == 0: a(f's_add_u32 m0, s{sLW}, {xslot(i)}')
            tx[(i, rg)] = a.vm(f'buffer_load_dwordx4 v{VXD+rg}, {sr(sX,4)}, s{XG+i} offen offset:{rg*1024} lds')
        return f
    def wdma(q, ks):
        def f():
            if ks == 0:
                a(f's_add_u32 m0, s{sLW}, {wslot(q)}')
                if q >= 7: a(f's_add_u32 s{WG_+q%7}, s{WG_+q%7}, 128')
            tw[(q, ks)] = a.vm(f'buffer_load_dwordx4 v{VW+ks}, {sr(sW,4)}, s{WG_+q%7} offen offset:{ks*1024} lds')
        return f
    def grp(i): return [xdma(i, r) for r in range(4)] + [wdma(i, k) for k in range(4)]
    for f in grp(0): f()
    a.srd(sWD, P_DBG, 0)
    a(f's_or_b32 s5, s2, s3\ns_cmp_eq_u32 s5, 0\ns_cselect_b32 s{sWD+2}, 256, 0\ns_bitset1_b32 s11, 31')
    a(f'v_mov_b32 v{VTAG}, s10\nv_mov_b32 v{VTAG+1}, s11')
    a.vm(f'buffer_store_dwordx2 {vr(VTAG,2)}, v{VL0}, {sr(sWD,4)}, 0 offen sc1')
    a.srd(sWS, P_WS, WS_END)
    VQ = deque(grp(1) + grp(2))
    a('v_and_b32 v13, 31, v2')
    a(f'v_lshrrev_b32 v5, 3, v13\nv_lshlrev_b32 v5, 10, v5\nv_and_b32 v8, 7, v13\nv_lshl_add_u32 v5, v8, 7, v5\nv_add_u32 v5, s{sLW}, v5')
    a('v_bfe_u32 v8, v13, 1, 3\nv_xor_b32 v8, v8, v14')
    for ks in range(4): a(f'v_xor_b32 v1, {2*ks}, v8\nv_lshl_add_u32 v{VX+ks}, v1, 4, v5')
    a.fill(VQ, 2)
    a('v_bfe_u32 v15, v2, 4, 1\nv_bfe_u32 v5, v2, 2, 2\nv_and_b32 v8, 3, v2')
    a('v_lshl_add_u32 v1, v14, 1, v15\nv_lshlrev_b32 v1, 12, v1\nv_lshl_add_u32 v1, v5, 7, v1\nv_lshl_add_u32 v1, v8, 3, v1')
    a(f'v_add_u32 v1, {3*SLOT}, v1')
    a('v_lshrrev_b32 v5, 1, v5\nv_lshl_add_u32 v5, v15, 1, v5\nv_xor_b32 v5, s3, v5')
    for j in range(4):
        a(f'v_xor_b32 v8, {j}, v5\nv_lshl_add_u32 v{VA+j}, v8, 5, v1\nv_add_u32 v{VA+4+j}, {4*SLOT}, v{VA+j}')
    a.fill(VQ, 2)
    a('v_bfe_u32 v5, v2, 2, 1\nv_cmp_eq_u32 vcc, v5, v15')
    a(f'v_mov_b32 v8, 0x3f803f80\nv_cndmask_b32 v{VSEL}, 0, v8, vcc')
    for i in range(1, 4): a(f'v_mov_b32 v{VSEL+i}, v{VSEL}')
    for i in range(4): a(f'v_mov_b32 v{VSS+i}, 0')
    a(f's_lshl_b32 s5, s{RB}, 1\ns_lshr_b32 s6, s3, 1\ns_add_u32 s5, s5, s6\ns_mul_i32 s5, s5, 112')
    a(f's_lshl_b32 s6, s{CB}, 3\ns_add_u32 s5, s5, s6\ns_lshl_b32 s5, s5, 11\ns_lshl_b32 s6, s4, 10\ns_add_u32 s{sHST}, s5, s6')
    a(f's_mul_i32 s5, s{RB}, 14\ns_add_u32 s5, s5, s{CB}\ns_lshl_b32 s{sPI}, s5, 13')
    a.fill(VQ, 2)
    a.wait(vm=tsh)
    for j in range(4):
        for c in range(2):
            src = SHR + 2 * c + (j >> 1)
            a(f'v_and_b32 v{152+2*j+c}, s{sMASK}, v{src}' if j & 1 else f'v_lshlrev_b32 v{152+2*j+c}, 16, v{src}')
    def unp(dst, src): a(f'v_lshlrev_b32 v{dst}, 16, v{src}\nv_and_b32 v{dst+1}, s{sMASK}, v{src}')
    for i in range(3):
        a.wait(vm=tk[i]); unp(160 + 2 * i, KR + i)
    KVO = VT
    for s in range(8):
        a.wait(vm=tv[s])
        unp(160 + 2 * (s + 3), KR + s + 3); unp(182, VRAW + s)
        d = vr(KVO + 2 * s, 2)
        a(f'v_pk_mul_f32 {d}, {vr(152,2)}, {vr(160+2*(s+3),2)}')
        for j in (1, 2, 3): a(f'v_pk_fma_f32 {d}, {vr(152+2*j,2)}, {vr(160+2*(s+3-j),2)}, {d}')
        a(f'v_pk_mul_f32 {d}, {d}, {vr(182,2)}')
        a.fill(VQ, 1)
    for c in range(2):
        for j in range(4):
            a(f'v_cvt_pk_bf16_f32 v{184+4*c+j}, v{KVO+2*(7-2*j)+c}, v{KVO+2*(6-2*j)+c}')
    a('s_lshl_b32 s5, s3, 1\nv_add_u32 v5, s5, v14\nv_and_b32 v8, 7, v13\nv_xor_b32 v5, v5, v8')
    a(f'v_lshlrev_b32 v8, 8, v13\nv_lshl_add_u32 v5, v5, 4, v8\nv_add_u32 v5, {KVX}, v5')
    a.lg(f'ds_write_b128 v5, {vr(184,4)}')
    tkw = a.lg(f'ds_write_b128 v5, {vr(188,4)} offset:128')
    a.drain(VQ)
    a(f's_mov_b32 s{sWD+2}, 256\nv_mov_b32 v5, 0')
    TAGLD = f'buffer_load_dwordx2 {vr(VTAG,2)}, v5, {sr(sWD,4)}, 0 offen sc1'
    ttag = a.vm(TAGLD)
    a.stamp(1)

    def wrd(t):
        q, ks = divmod(t, 4)
        off = wslot(q) - 3 * SLOT + ks * 1024
        base = VA
        if off >= 4 * SLOT: base += 4; off -= 4 * SLOT
        ops = []
        for j in range(4):
            r = WF + 16 * (t & 1) + 4 * j
            ops.append(f'ds_read_b64_tr_b16 {ar(r,2)}, v{base+j} offset:{off}')
            ops.append(f'ds_read_b64_tr_b16 {ar(r+2,2)}, v{base+j} offset:{off+512}')
        return ops
    txr = {}
    def xrd(i, ks): txr[4 * i + ks] = a.lg(f'ds_read_b128 {vr(XF+16*i+4*ks,4)}, v{VX+ks} offset:{xslot(i)}')

    XQ = deque()
    T = {}
    def kv_out():
        q = []
        q.append(I(a, 'v_lshrrev_b32 v8, 3, v2\nv_and_b32 v9, 7, v2'))
        q.append(I(a, 'v_lshrrev_b32 v10, 1, v8\nv_xor_b32 v10, v10, v9'))
        q.append(I(a, f'v_lshlrev_b32 v11, 7, v8\nv_lshl_add_u32 v10, v10, 4, v11'))
        q.append(I(a, f's_lshl_b32 s5, s3, 11\ns_add_u32 s5, s5, {KVX}\nv_add_u32 v10, s5, v10'))
        q.append(I(a, 'v_xor_b32 v11, 64, v10'))
        q.append(lambda: a.lg(f'ds_read_b128 {vr(184,4)}, v10'))
        q.append(lambda: T.__setitem__('kvr', a.lg(f'ds_read_b128 {vr(188,4)}, v11 offset:1024')))
        q.append(I(a, 'v_lshlrev_b32 v8, 12, v8\nv_lshl_add_u32 v8, v9, 4, v8'))
        q.append(I(a, f's_lshl_b32 s5, s{CBL}, 2\ns_add_u32 s5, s5, s3\ns_lshl_b32 s6, s5, 16\ns_lshl_b32 s7, s{ROW64}, 7'))
        q.append(I(a, f's_add_u32 s6, s6, s7\ns_add_u32 s6, s6, {WS_KVT}\ns_add_u32 s7, s6, 0x8000'))
        def st():
            a.wait(lg=T['kvr'])
            a.vm(f'buffer_store_dwordx4 {vr(184,4)}, v8, {sr(sWS,4)}, s6 offen sc1')
            T['kvs'] = a.vm(f'buffer_store_dwordx4 {vr(188,4)}, v8, {sr(sWS,4)}, s7 offen sc1')
        q.append(st)
        q.append(I(a, f's_lshl_b32 s5, s5, 8\ns_lshl_b32 s6, s{ROW64}, 3\ns_add_u32 s5, s5, s6\ns_add_u32 s9, s5, {FL1}'))
        q.append('g2')
        q.append(lambda: tag_get(a, ttag, VTAG, TAGLD, 'tag'))
        def fl():
            a.wait(vm=T['kvs'])
            a.vm(f'buffer_store_dwordx2 {vr(VTAG,2)}, v{VL0}, {sr(sWS,4)}, s9 offen sc1')
        q.append(fl)
        return q
    XQ.extend(kv_out())

    def rbf(r): return [I(a, f'v_cvt_pk_bf16_f32 v{r}, v{r}, v{r}'), I(a, f'v_lshlrev_b32 v{r}, 16, v{r}')]
    def stats():
        q = []
        t0, t1 = VT, VT + 1
        q.append(I(a, f'v_mul_f32 v{t0}, {f32(1/448)}, v{VSUM}'))
        q.append(I(a, f'v_add_f32 v{VSS}, v{VSS}, v{VSS+1}')); q.append(I(a, f'v_add_f32 v{VSS+2}, v{VSS+2}, v{VSS+3}'))
        q.append(I(a, f'v_cvt_pk_bf16_f32 v{VM}, v{t0}, v{t0}'))
        q.append(I(a, f'v_add_f32 v{VSS}, v{VSS}, v{VSS+2}'))
        q.append(I(a, f'v_xor_b32 v{t1}, 0x80008000, v{VM}'))
        q.append(lambda: a(f'v_cmp_gt_u32 vcc, 32, v2\nv_mov_b32 v{VSS+1}, v{VSS}\nv_lshlrev_b32 v{VM}, 16, v{VM}\nv_cndmask_b32 v{VSUM}, 0, v{t1}, vcc') or 3.0)
        q.append(I(a, f'v_permlane32_swap_b32 v{VSS}, v{VSS+1}'))
        q.append(I(a, f'v_lshrrev_b32 v{VSUM+1}, 16, v{VSUM}'))
        q.append(I(a, f'v_mov_b32 v{VSUM+2}, 0')); q.append(I(a, f'v_mov_b32 v{VSUM+3}, 0'))
        q.append(I(a, f'v_add_f32 v{VSS}, v{VSS}, v{VSS+1}'))
        q.append(I(a, f'v_mul_f32 v{t0}, v{t0}, v{t0}'))
        q.append(I(a, f'v_mul_f32 v{VSS}, {f32(1/448)}, v{VSS}'))
        q.append(I(a, f'v_sub_f32 v{VSS}, v{VSS}, v{t0}'))
        q.append(I(a, f'v_max_f32 v{VSS}, 0, v{VSS}'))
        q += rbf(VSS)
        q.append(I(a, f'v_add_f32 v{VSS}, {f32(1e-5)}, v{VSS}')); q += rbf(VSS)
        q.append(I(a, f'v_sqrt_f32 v{VSS}, v{VSS}')); q += rbf(VSS)
        q.append(I(a, f'v_rcp_f32 v{VR}, v{VSS}'))
        q.append(I(a, f'v_and_b32 v8, 31, v2\nv_lshlrev_b32 v8, 3, v8'))
        q.append(I(a, f's_lshl_b32 s5, s3, 8\ns_add_u32 s5, s5, {STL}\nv_add_u32 v8, s5, v8'))
        q.append(I(a, f'v_mul_f32 v{VR2}, v{VR}, v{VR}'))
        q.append(lambda: a.lg(f'ds_write_b64 v8, {vr(VM,2)}'))
        return q
    CSV = 231
    def csplit(stage):
        q = []
        t = VT + 2
        q.append(I(a, f'v_and_b32 v{t}, s{sMASK}, v{CSV}'))
        q.append(I(a, f'v_sub_f32 v{t+1}, v{CSV}, v{t}'))
        q.append(I(a, f'v_and_b32 v{t+2}, s{sMASK}, v{t+1}'))
        q.append(I(a, f'v_sub_f32 v{t+1}, v{t+1}, v{t+2}'))
        q.append(I(a, f'v_lshrrev_b32 v{t}, 16, v{t}'))
        q.append(I(a, f'v_or_b32 v{t}, v{t}, v{t+2}'))
        q.append(I(a, f'v_lshrrev_b32 v{t+1}, 16, v{t+1}'))
        q.append(I(a, f's_lshl_b32 s5, s3, 9\ns_add_u32 s5, s5, {CSX+stage*2048}\nv_lshlrev_b32 v9, 3, v2\nv_add_u32 v9, s5, v9'))
        q.append(lambda: T.__setitem__(f'csw{stage}', a.lg(f'ds_write_b64 v9, {vr(t,2)}')))
        return q
    AC = VT + 8
    def corr(stage):
        q = []
        for j in range(4):
            q.append(I(a, f'v_mov_b32 v{AC+4*j+2}, 0')); q.append(I(a, f'v_mov_b32 v{AC+4*j+3}, 0'))
            if j: q.append(I(a, f'v_xor_b32 v10, {j*512}, v9'))
            q.append(lambda j=j: T.__setitem__(f'ac{j}', a.lg(f'ds_read_b64 {vr(AC+4*j,2)}, v{10 if j else 9}')))
        for j in range(4):
            def m(j=j):
                a.wait(lg=T[f'ac{j}'])
                acc = ar(ACCA + 16 * j, 16) if stage == 0 else vr(ACCB + 16 * j, 16)
                a(f'v_mfma_f32_32x32x16_bf16 {acc}, {vr(AC+4*j,4)}, {vr(VSUM,4)}, {acc}')
                return 3.0
            q.append(m)
        return q
    def epi(stage):
        q = []
        for j in range(4):
            for e in range(8):
                t = VT + e
                if stage == 0:
                    u = VT + 8 + (e & 1)
                    q.append(I(a, f'v_accvgpr_read_b32 v{t}, a{ACCA+16*j+e}'))
                    q.append(I(a, f'v_accvgpr_read_b32 v{u}, a{ACCA+16*j+8+e}'))
                    q.append(I(a, f'v_mul_f32 v{t}, v{t}, v{VR2}'))
                    q.append(I(a, f'v_mul_f32 v{t}, v{t}, v{u}'))
                else:
                    q.append(I(a, f'v_mul_f32 v{t}, v{ACCB+16*j+e}, v{VR2}'))
                    q.append(I(a, f'v_mul_f32 v{t}, v{t}, v{ACCB+16*j+8+e}'))
            o = VT + 12 + 4 * (j & 1)
            for k in range(4): q.append(I(a, f'v_cvt_pk_bf16_f32 v{o+k}, v{VT+2*k}, v{VT+2*k+1}'))
            def hst(o=o, j=j):
                a(f's_xor_b32 s5, s3, {j+4*stage}\ns_lshl_b32 s5, s5, 11\ns_add_u32 s5, s5, s{sHST}')
                T[f'hs{stage}'] = a.vm(f'buffer_store_dwordx4 {vr(o,4)}, v{VL16}, {sr(sWS,4)}, s5 offen sc1')
                return 2.0
            q.append(hst)
            q.append(lambda j=j: a.open.add(f'epi{stage}_{j}') or 0.0)
        return q
    def hflag(stage):
        def f():
            a(f's_lshl_b32 s5, s{RB}, 1\ns_lshr_b32 s6, s3, 1\ns_add_u32 s5, s5, s6\ns_lshl_b32 s5, s5, 9')
            a(f's_lshl_b32 s6, s{CB}, 1\ns_and_b32 s7, s3, 1\ns_add_u32 s6, s6, s7\ns_lshl_b32 s6, s6, 3')
            a(f's_add_u32 s5, s5, s6\ns_add_u32 s5, s5, {FL3+stage*256}')
            a.wait(vm=T[f'hs{stage}'])
            a.vm(f'buffer_store_dwordx2 {vr(VTAG,2)}, v{VL0}, {sr(sWS,4)}, s5 offen sc1')
            return 3.0
        return [f]
    RAW = [VX, VT + 16]
    URAW = [VSS, VT + 12]
    def ssm_load(ch):
        def f():
            if ch == 0:
                a('v_lshlrev_b32 v12, 4, v0\nv_subrev_u32 v13, 16, v12')
                a.srd(sT0, P_SSM, 4096, add=f's{sPI}')
                a(f's_add_u32 s{sT1}, s{sT0}, 4096\ns_addc_u32 s{sT1+1}, s{sT0+1}, 0\ns_mov_b32 s{sT1+2}, 4096')
            s_ = sT0 if ch == 0 else sT1
            a.vm(f'buffer_load_dwordx4 {vr(RAW[ch],4)}, v13, {sr(s_,4)}, 0 offen')
            T[f'ssm{ch}'] = a.vm(f'buffer_load_dwordx4 {vr(RAW[ch]+4,4)}, v12, {sr(s_,4)}, 0 offen')
            return 2.0
        return f
    def toep(ch):
        q = []
        w = RAW[ch]; Z = [VT, VT + 6]
        q.append(I(a, f'v_add_u32 v11, {TZ[ch]+16}, v12'))
        q.append(lambda: a.wait(vm=T[f'ssm{ch}']))
        def wr(src, c): return lambda: a.lg(f'ds_write_b128 v11, {vr(src,4)} offset:{c*CS}')
        for n in range(6): q.append(I(a, f'v_alignbit_b32 v{Z[0]+n}, v{w+n+1}, v{w+n}, 16'))
        q += [wr(Z[0], 0), wr(Z[0] + 2, 4)]
        for n in range(1, 7): q.append(I(a, f'v_alignbit_b32 v{Z[1]+n-1}, v{w+n+1}, v{w+n}, 16'))
        q += [wr(Z[1], 2), wr(Z[1] + 2, 6), wr(w + 2, 3), wr(w + 4, 7)]
        for n in range(1, 7): q.append(I(a, f'v_mov_b32 v{Z[0]+n-1}, v{w+n}'))
        q += [wr(Z[0], 1), wr(Z[0] + 2, 5)]
        for n in range(4): q.append(I(a, f'v_mov_b32 v{Z[1]+n}, 0'))
        q.append(I(a, f'v_and_b32 v11, 7, v2\nv_mul_u32_u24 v11, {CS}, v11'))
        q.append(I(a, f'v_add_u32 v11, {TZ[ch]}, v11'))
        q.append(lambda: a.lg(f'ds_write_b128 v11, {vr(Z[1],4)}'))
        if ch == 0:
            q.append(I(a, 'v_min_u32 v11, 29, v2\nv_lshlrev_b32 v11, 4, v11'))
            q.append(lambda: a.lg(f'ds_write_b128 v11, {vr(Z[1],4)} offset:{UB}'))
            q.append(lambda: a.lg(f'ds_write_b128 v11, {vr(Z[1],4)} offset:{UB+US}'))
        return q
    P12 = f'buffer_load_dwordx2 v[14:15], v1, {sr(sWS,4)}, 0 offen sc1'
    def poll12():
        a(f's_lshr_b32 s5, s{sPI}, 16\ns_lshl_b32 s5, s5, 8\ns_add_u32 s5, s5, {FL1}')
        a(f's_lshl_b32 s6, s3, 8\ns_add_u32 s6, s6, {FL2-256}')
        a('v_min_u32 v1, 59, v2\nv_lshlrev_b32 v1, 3, v1\nv_cmp_gt_u32 vcc, 32, v2\nv_mov_b32 v14, s6\nv_mov_b32 v15, s5')
        a('v_cndmask_b32 v14, v14, v15, vcc\nv_add_u32 v1, v1, v14')
        T['p12'] = a.vm(P12)
        return 3.0
    def g2setup():
        a(f's_mov_b32 s30, s{P_SD}\ns_mov_b32 s31, s{P_SD+1}')
        a(f's_mul_i32 s5, s{ROW64}, {112*2048}')
        a.srd(sH, P_WS, 112 * 2048, add='s5')
        a(f's_mul_i32 s5, s{CBL}, {112*2048}\ns_add_u32 s5, s5, {WS_WDT}')
        a.srd(sWD, P_WS, 112 * 2048, add='s5')
        return 4.0
    def kft(i):
        def f():
            if i == 0: a(f's_lshl_b32 s{KF}, s{ROT}, 15\ns_lshl_b32 s5, s3, 11\ns_add_u32 s{KF}, s{KF}, s5')
            else: a(f's_add_u32 s{KF+i}, s{KF+i-1}, {8*2048}\ns_cmp_ge_u32 s{KF+i}, {112*2048}\ns_cselect_b32 s5, {112*2048}, 0\ns_sub_u32 s{KF+i}, s{KF+i}, s5')
            return 2.0
        return f
    VB8 = 5
    def wdreg(n):
        return 96 + 4 * n if n < 40 else 4 * (n - 40)
    def wdload(n):
        def f():
            sl, dt = divmod(n, 2)
            T[f'wd{n}'] = a.vm(f'buffer_load_dwordx4 {ar(wdreg(n),4)}, v{VL16 if sl < 14 else VB8}, {sr(sWD,4)}, s{KF+sl%14} offen offset:{dt*1024}')
        return f
    def uload():
        poll_check(a, T['p12'], 14, P12, 'p12')
        a(f'v_add_u32 v{VB8}, 8192, v{VL16}')
        return 3.0
    def uld(ch):
        def f():
            a(f's_add_u32 s5, s{sPI}, {WS_KVT+ch*4096}')
            T[f'u{ch}'] = a.vm(f'buffer_load_dwordx4 {vr(URAW[ch],4)}, v12, {sr(sWS,4)}, s5 offen sc1')
        return f
    def uwr(ch):
        def f():
            a.wait(vm=T[f'u{ch}'])
            a.lg(f'ds_write_b128 v12, {vr(URAW[ch],4)} offset:{UB+480+ch*US}')
        return f
    P3 = lambda st: f'buffer_load_dwordx2 v[14:15], v1, {sr(sWS,4)}, s8 offen offset:{st*256} sc1'
    def poll3(st):
        def f():
            if st == 0: a(f'v_min_u32 v1, 27, v2\nv_lshlrev_b32 v1, 3, v1\ns_lshl_b32 s8, s{ROW64}, 9\ns_add_u32 s8, s8, {FL3}')
            T[f'p3{st}'] = a.vm(P3(st))
        return f

    for i in range(3, 7): VQ.append(f'g{i-2}'); VQ.extend(grp(i))
    VQ.append('g5'); VQ.extend([wdma(q, k) for q in (7, 8) for k in range(4)])
    VQ.append('g6'); VQ.extend([wdma(q, k) for q in (9, 10) for k in range(4)])
    VQ.append('g7'); VQ.append(poll12); VQ.append(ssm_load(0)); VQ.append(g2setup)
    VQ.extend([wdma(q, k) for q in (11, 12, 13) for k in range(4)])
    VQ.extend([kft(i) for i in range(14)])
    VQ.append('g8'); VQ.append(uload); VQ.append('stats'); VQ.append(uld(0))
    VQ.extend([wdload(n) for n in range(16)])
    VQ.append('epi0_3'); VQ.append(ssm_load(1)); VQ.append('tz0'); VQ.append(uld(1))
    VQ.extend([wdload(n) for n in range(16, 44)])
    VQ.append('g13'); VQ.append(poll3(0))
    VQ.extend([wdload(n) for n in range(44, 56)])
    XQ.append('g7'); XQ.append('csv0'); XQ.extend(csplit(0)); XQ.extend(stats()); XQ.append(lambda: a.open.add('stats') or 0.0)
    XQ.append('g8'); XQ.extend(corr(0)); XQ.append(I(a, 's_nop 0')); XQ.extend(epi(0)); XQ.extend(toep(0)); XQ.append(lambda: a.open.add('tz0') or 0.0)
    XQ.extend(hflag(0)); XQ.append(uwr(0)); XQ.append('g10'); XQ.extend(toep(1)); XQ.append(uwr(1))

    a.wait(vm=tw[(0, 3)], lg=tkw)
    a('s_barrier')
    a.stamp(2)
    for ks in range(4): xrd(0, ks)
    tr = {0: [a.lg(o) for o in wrd(0)]}
    a.open.add('g0')
    for t in range(56):
        q, ks = divmod(t, 4)
        stage = q // 7
        if t == 28: a.stamp(3)
        nxt = wrd(t + 1) if t + 1 < 56 else []
        if ks == 3:
            if q == 13:
                a.drain(XQ)
                a.wait_all(vm=False)
            else:
                if q == 7: assert 'csw0' in T
                a.wait(lg=a.lg_n, vm=tw[(q + 1, 3)])
            a('s_barrier')
            a.open.add(f'g{q+1}')
            if q + 1 < 7:
                for k2 in range(4): xrd(q + 1, k2)
        tr[t + 1] = []
        xf = vr(XF + 4 * (t % 28), 4)
        for j in range(4):
            if j % 2 == 0: a.wait(lg=max(tr[t][2 * j + 3], txr[t] if stage == 0 else 0))
            acc = ar(ACCA + 16 * j, 16) if stage == 0 else vr(ACCB + 16 * j, 16)
            a(f'v_mfma_f32_32x32x16_bf16 {acc}, {ar(WF+16*(t&1)+4*j,4)}, {xf}, {"0" if t % 28 == 0 else acc}')
            for o in nxt[2 * j: 2 * j + 2]: tr[t + 1].append(a.lg(o))
            if stage == 0: a(f'v_dot2c_f32_bf16 v{VSS+j}, v{XF+4*t+j}, v{XF+4*t+j}')
            if j == 0:
                if t == 28:
                    a(f'v_mov_b32 v{CSV}, v{CSUM}'); a.open.add('csv0')
                a(f'v_mfma_f32_16x16x32_bf16 {vr(CSUM,4)}, {vr(VSEL,4)}, {ar(WF+16*(t&1),4)}, {"0" if t % 28 == 0 else vr(CSUM,4)}')
            if j == 2 and stage == 0:
                a(f'v_mfma_f32_16x16x32_bf16 {vr(VSUM,4)}, {vr(VSEL,4)}, {xf}, {"0" if t == 0 else vr(VSUM,4)}')
            if j % 2 == 1: a.fill(VQ, 1)
            a.fill(XQ, 1 if stage == 0 else (3 if j % 2 == 0 else 2))
    a.stamp(4)
    a('s_lshr_b32 s10, s3, 1\ns_and_b32 s11, s3, 1')
    a('v_and_b32 v8, 15, v2\nv_lshrrev_b32 v10, 4, v2')
    a(f'v_and_b32 v11, 7, v8\nv_mul_u32_u24 v11, {CS}, v11\nv_lshrrev_b32 v13, 3, v8\nv_add_u32 v13, v13, v10\nv_lshl_add_u32 v11, v13, 4, v11')
    a(f's_mul_i32 s5, s10, {TZ[1]}\ns_lshl_b32 s6, s11, 8\ns_add_u32 s5, s5, s6\nv_add_u32 v11, s5, v11')
    a('v_lshlrev_b32 v13, 1, v8\nv_sub_u32 v13, v13, v10\nv_add_u32 v13, 19, v13\nv_lshlrev_b32 v13, 4, v13')
    a(f's_mul_i32 s5, s10, {US}\ns_add_u32 s5, s5, {UB}\ns_sub_u32 s5, s5, s6\nv_add_u32 v13, s5, v13')
    a(f'v_mov_b32 v{CSV}, v{CSUM}')
    CACC = 72
    pool = deque(16 + 4 * i for i in range(14))
    seq = []
    for rr in range(4):
        for ip in range(8):
            for n in range(7 - ip, -1, -1): seq.append((rr, ip, n))
    first, last = {}, {}
    for idx, (rr, ip, n) in enumerate(seq):
        for key in (('A', rr, ip), ('B', rr, n)):
            first.setdefault(key, idx); last[key] = idx
    order = deque(sorted(first, key=lambda k: first[k]))
    loc, tok = {}, {}
    def cread():
        if not order or not pool: return False
        key = order.popleft(); r = pool.popleft(); loc[key] = r
        k, rr, n = key
        if k == 'A': tok[key] = a.lg(f'ds_read_b128 {vr(r,4)}, v11 offset:{(8*n+rr)*64}')
        else: tok[key] = a.lg(f'ds_read_b128 {vr(r,4)}, v13 offset:{(8*n+3-rr)*64}')
        return True
    hbuf_free = deque([('a', 64 + 4 * i) for i in range(8)] + [('v', 104 + 4 * i) for i in range(6)])
    hloc = {}
    def hload(n):
        def f():
            qd, i = divmod(n, 14); stg, st = divmod(qd, 2)
            fl, r = hbuf_free.popleft(); hloc[n] = (fl, r)
            T[f'h{n}'] = a.vm(f'buffer_load_dwordx4 {vr(r,4,fl)}, v{VL16 if stg == 0 else VB8}, {sr(sH,4)}, s{KF+i} offen offset:{st*1024} sc1')
        return f
    VQ.append(lambda: poll_check(a, T['p30'], 14, P3(0), 'p30') or 3.0)
    VQ.extend([hload(n) for n in range(14)])
    for j in range(4):
        VQ.append(f'epi1_{j}')
        VQ.append(lambda j=j: hbuf_free.extend([('v', ACCB + 16 * j + 4 * i) for i in range(4)]) or 0.0)
        VQ.extend([hload(n) for n in range(14 + 4 * j, min(28, 18 + 4 * j))])
    XQ.extend(csplit(1)); XQ.append('cbar'); XQ.extend(corr(1)); XQ.append(I(a, 's_nop 0')); XQ.extend(epi(1)); XQ.append('c100'); XQ.extend(hflag(1))
    for _ in range(6): cread()
    seen = set()
    for idx, (rr, ip, n) in enumerate(seq):
        ka, kb = ('A', rr, ip), ('B', rr, n)
        while ka not in tok or kb not in tok: assert cread(), (idx, ka, kb)
        if idx == 14:
            assert 'csw1' in T
            a.wait(lg=T['csw1']); a('s_barrier'); a.open.add('cbar')
        if idx == 120: a.open.add('c100')
        a.wait(lg=max(tok[ka], tok[kb]))
        tt = ip + n
        acc = vr(CACC + 4 * tt, 4)
        a(f'v_mfma_f32_16x16x32_bf16 {acc}, {vr(loc[ka],4)}, {vr(loc[kb],4)}, {acc if tt in seen else "0"}')
        seen.add(tt)
        for key in (ka, kb):
            if last[key] == idx: pool.append(loc[key])
        did = cread()
        if idx % 3 == 2: a.fill(VQ, 1)
        else: a.fill(XQ, 1 if did else 2)
    a.drain(XQ); a.drain(VQ)
    a.stamp(5)
    GACC = [16, 48]
    a(f's_lshl_b32 s5, s3, 13\ns_add_u32 s5, s5, {CRED}\nv_add_u32 v8, s5, v{VL16}')
    for t in range(8): XQ.append(lambda t=t: T.__setitem__('cw', a.lg(f'ds_write_b128 v8, {vr(CACC+4*t,4)} offset:{t*1024}')))
    XQ.append(lambda: hbuf_free.extend([('v', 80 + 4 * i) for i in range(6)]) or a.open.add('caccfree') or 0.0)
    XQ.append(I(a, 'v_lshrrev_b32 v9, 5, v2\nv_bfe_u32 v10, v2, 1, 4'))
    XQ.append(I(a, 'v_lshlrev_b32 v9, 10, v9\nv_lshl_add_u32 v9, v10, 4, v9'))
    XQ.append(I(a, 'v_and_b32 v10, 1, v2\nv_lshl_add_u32 v9, v10, 9, v9'))
    XQ.append(I(a, f's_lshl_b32 s5, s10, 14\ns_lshl_b32 s6, s11, 12\ns_add_u32 s5, s5, s6\ns_add_u32 s5, s5, {CRED}\nv_add_u32 v9, s5, v9'))
    XQ.append(I(a, f's_mul_i32 s5, s10, {US}\ns_lshl_b32 s6, s11, 11\ns_add_u32 s5, s5, s6\ns_add_u32 s5, s5, {UB+480}\nv_add_u32 v10, s5, v{VL16}'))
    def dload():
        a.srd(sT0, 30, 896)
        a(f's_lshr_b32 s5, s{sPI}, 11\nv_mov_b32 v11, s5')
        T['D'] = a.vm(f'buffer_load_dword v13, v11, {sr(sT0,4)}, 0 offen')
        return 2.0
    def cbar2():
        a.wait(lg=T['cw']); a('s_barrier'); return 2.0
    XQ.append(cbar2)
    YB = [VT, 200]
    for k in range(2):
        b = YB[k]
        for p in range(2):
            for h in range(2):
                XQ.append(lambda b=b, p=p, h=h, k=k: a.lg(f'ds_read_b128 {vr(b+8*p+4*h,4)}, v9 offset:{k*2048 + p*8192 + h*256}'))
        XQ.append(lambda b=b, k=k: T.__setitem__(f'yr{k}', a.lg(f'ds_read_b128 {vr(b+16,4)}, v10 offset:{k*1024}')))
    def dfix():
        a.wait(vm=T['D'])
        a(f's_cmp_eq_u32 s10, 0\ns_cselect_b32 s5, 16, 0\nv_lshlrev_b32 v13, s5, v13\nv_and_b32 v13, s{sMASK}, v13')
        a(f's_lshl_b32 s5, s10, 12\ns_lshl_b32 s6, s11, 11\ns_add_u32 s5, s5, s6\ns_add_u32 s5, s5, s{sPI}\ns_add_u32 s9, s5, {WS_YT}')
        return 4.0
    XQ.append(dfix)
    for k in range(2):
        b = YB[k]
        XQ.append(lambda k=k: a.wait(lg=T[f'yr{k}']))
        for e in range(8): XQ.append(I(a, f'v_add_f32 v{b+e}, v{b+e}, v{b+8+e}'))
        for e in range(8):
            ee = 7 - e
            XQ.append(I(a, f'v_and_b32 v{b+8+e}, s{sMASK}, v{b+16+ee//2}' if ee & 1 else f'v_lshlrev_b32 v{b+8+e}, 16, v{b+16+ee//2}'))
            XQ.append(I(a, f'v_fmac_f32 v{b+e}, v{b+8+e}, v13'))
        for j in range(4): XQ.append(I(a, f'v_cvt_pk_bf16_f32 v{b+20+j}, v{b+2*j}, v{b+2*j+1}'))
        XQ.append(lambda b=b, k=k: T.__setitem__('ys', a.vm(f'buffer_store_dwordx4 {vr(b+20,4)}, v{VL16}, {sr(sWS,4)}, s9 offen offset:{k*1024} sc1')))
    def yflag():
        a(f's_lshr_b32 s5, s{sPI}, 12\ns_add_u32 s5, s5, s10\ns_lshr_b32 s6, s5, 6\ns_lshl_b32 s6, s6, 1\ns_add_u32 s6, s6, s11')
        a(f's_lshl_b32 s6, s6, 9\ns_and_b32 s5, s5, 63\ns_lshl_b32 s5, s5, 3\ns_add_u32 s5, s5, s6\ns_add_u32 s5, s5, {FL4}')
        a.wait(vm=T['ys'])
        a.vm(f'buffer_store_dwordx2 {vr(VTAG,2)}, v{VL0}, {sr(sWS,4)}, s5 offen sc1')
        return 4.0
    XQ.append('yf'); XQ.append(yflag)
    YS = 80
    XR, YR = 224, 232
    def xload():
        a(f'v_lshrrev_b32 v8, 2, v2\nv_and_b32 v9, 3, v2\nv_mul_u32_u24 v10, 896, v8\nv_lshl_add_u32 v10, v9, 4, v10')
        a(f's_lshl_b32 s5, s{ROW64}, 1\ns_add_u32 s5, s5, s10\ns_mul_i32 s5, s5, {32*896}\ns_lshl_b32 s6, s{CBL}, 7\ns_add_u32 s5, s5, s6\ns_lshl_b32 s6, s11, 6\ns_add_u32 s5, s5, s6\ns_add_u32 s6, s5, {16*896}')
        a.vm(f'buffer_load_dwordx4 {vr(XR,4)}, v10, {sr(sX,4)}, s5 offen')
        T['x'] = a.vm(f'buffer_load_dwordx4 {vr(XR+4,4)}, v10, {sr(sX,4)}, s6 offen')
        a(f'v_mul_u32_u24 v11, {YS}, v8\nv_lshl_add_u32 v11, v9, 4, v11\ns_mul_i32 s5, s3, 5120\ns_add_u32 s7, s5, {YXL}\nv_add_u32 v11, s7, v11')
        a('v_lshlrev_b32 v12, 12, v8\nv_lshl_add_u32 v12, v9, 4, v12')
        return 6.0
    XQ.append(xload)
    XN, XV = 200, 240
    def xstage():
        a.wait(vm=T['x'])
        a.lg(f'ds_write_b128 v11, {vr(XR,4)}')
        a.lg(f'ds_write_b128 v11, {vr(XR+4,4)} offset:{16*YS}')
        a(f'v_and_b32 v8, 31, v2\nv_lshrrev_b32 v9, 5, v2\nv_mul_u32_u24 v10, {YS}, v8\nv_lshl_add_u32 v10, v9, 3, v10\nv_add_u32 v10, s7, v10')
        a(f's_lshl_b32 s5, s{HALF}, 1\ns_add_u32 s5, s5, s10\ns_lshl_b32 s5, s5, 8\ns_add_u32 s5, s5, {STL}\nv_lshlrev_b32 v13, 3, v8\nv_add_u32 v13, s5, v13')
        for q in range(4): a.lg(f'ds_read_b64 {vr(XR+2*q,2)}, v10 offset:{q*16}')
        T['xs'] = a.lg(f'ds_read_b64 {vr(216,2)}, v13')
        return 8.0
    XQ.append('xs'); XQ.append(xstage)
    XQ.append(lambda: a.wait(lg=T['xs']))
    for i in range(16):
        src = XR + i // 2
        XQ.append(I(a, f'v_and_b32 v{XV+i}, s{sMASK}, v{src}' if i & 1 else f'v_lshlrev_b32 v{XV+i}, 16, v{src}'))
        XQ.append(I(a, f'v_sub_f32 v{XN+i}, v{XV+i}, v216'))
        XQ.append(I(a, f'v_mul_f32 v{XN+i}, v{XN+i}, v217'))
    XQ.append(I(a, f'v_mul_u32_u24 v13, {PR}, v8\nv_lshl_add_u32 v13, v9, 4, v13'))
    XQ.append(I(a, f's_mul_i32 s5, s10, {PWH}\ns_lshl_b32 s6, s11, 7\ns_add_u32 s5, s5, s6\ns_add_u32 s5, s5, {EB}\nv_add_u32 v10, s5, v13'))
    XQ.append(I(a, f's_mul_i32 s5, s3, {PWH}\nv_add_u32 v13, s5, v13\nv_add_u32 v218, {PRED[0]}, v13'))
    XQ.append(I(a, f'v_bfe_u32 v219, v2, 2, 2\nv_lshl_add_u32 v219, v9, 2, v219\nv_mul_u32_u24 v219, {YS}, v219'))
    XQ.append(I(a, 'v_bfe_u32 v8, v2, 4, 1\nv_lshl_add_u32 v219, v8, 5, v219\nv_and_b32 v8, 3, v2\nv_lshl_add_u32 v219, v8, 3, v219\nv_add_u32 v219, s7, v219'))
    XQ.append(I(a, f'v_lshrrev_b32 v8, 3, v0\nv_and_b32 v9, 7, v0\nv_mul_u32_u24 v220, {PR}, v8\nv_lshl_add_u32 v220, v9, 5, v220'))
    XQ.append(I(a, f'v_mul_u32_u24 v221, 896, v8\nv_lshl_add_u32 v221, v9, 4, v221\nv_add_u32 v222, {PRED[0]}, v220'))
    XQ.append(lambda: a.open.add('xdone') or 0.0)
    XQ.append('q3')
    for dt in range(2):
        for q in range(4):
            XQ.append(lambda dt=dt, q=q: T.__setitem__('pw0', a.lg(f'ds_write_b128 v218, {vr(GACC[0]+16*dt+4*q,4)} offset:{dt*128+q*32}')))
    def bar3():
        a.wait(lg=T['pw0']); a('s_barrier'); return 2.0
    XQ.append(bar3)
    for p in range(4):
        for h in range(2):
            XQ.append(lambda p=p, h=h: T.__setitem__('pr0', a.lg(f'ds_read_b128 {vr(GACC[0]+8*p+4*h,4)}, v222 offset:{p*PWH+h*16}')))
    XQ.append(lambda: a.wait(lg=T['pr0']))
    b = GACC[0]
    for e in range(8): XQ.append(I(a, f'v_add_f32 v{b+e}, v{b+e}, v{b+8+e}')); XQ.append(I(a, f'v_add_f32 v{b+16+e}, v{b+16+e}, v{b+24+e}'))
    for e in range(8): XQ.append(I(a, f'v_add_f32 v{b+e}, v{b+e}, v{b+16+e}'))
    P4 = f'buffer_load_dwordx2 v[14:15], v1, {sr(sWS,4)}, s8 offen sc1'
    def poll4():
        a(f'v_lshlrev_b32 v1, 3, v2\ns_lshl_b32 s8, s{CBL}, 1\ns_lshr_b32 s5, s{ROW64}, 4\ns_add_u32 s8, s8, s5\ns_lshl_b32 s8, s8, 9\ns_add_u32 s8, s8, {FL4}')
        T['p4'] = a.vm(P4)
        return 2.0
    def yload():
        poll_check(a, T['p4'], 14, P4, 'p4')
        a(f's_lshl_b32 s5, s{CBL}, 1\ns_add_u32 s5, s5, s11\ns_lshl_b32 s5, s5, 17\ns_lshl_b32 s6, s{ROW64}, 7\ns_add_u32 s5, s5, s6\ns_lshl_b32 s6, s10, 6\ns_add_u32 s5, s5, s6\ns_add_u32 s5, s5, {WS_YT}\ns_add_u32 s6, s5, 0x10000')
        a.vm(f'buffer_load_dwordx4 {vr(YR,4)}, v12, {sr(sWS,4)}, s5 offen sc1')
        T['y'] = a.vm(f'buffer_load_dwordx4 {vr(YR+4,4)}, v12, {sr(sWS,4)}, s6 offen sc1')
        return 6.0
    VQ.append(dload); VQ.append(poll3(1)); VQ.append('m10')
    VQ.append(lambda: poll_check(a, T['p31'], 14, P3(1), 'p31') or 3.0)
    class HL:
        pass
    hb = deque(range(28, 56))
    for m in range(112):
        n, dt = divmod(m, 2)
        qd, i = divmod(n, 14); stg, st = divmod(qd, 2)
        if m % 28 == 0 and m: a.stamp(5 + m // 28)
        if m == 10: a.open.add('m10')
        if m == 40: a.open.add('yf')
        if m == 50: a.open.add('xs')
        if m == 86: a.open.add('q3')
        if m == 66: assert not hb or True; poll4()
        if m == 92:
            assert 'xdone' in a.open
            yload()
        wn = (stg * 14 + i) * 2 + dt
        a.wait(vm=max(T[f'h{n}'], T[f'wd{wn}']))
        acc = vr(GACC[st] + 16 * dt, 16)
        fl, r = hloc[n]
        a(f'v_mfma_f32_32x32x16_bf16 {acc}, {ar(wdreg(wn),4)}, {vr(r,4,fl)}, {"0" if (stg == 0 and i == 0) else acc}')
        if dt == 1: hbuf_free.append(hloc[n])
        if VQ: a.fill(VQ, 1)
        elif hb and hbuf_free and len(hbuf_free) > 1: hload(hb.popleft())()
        a.fill(XQ, 4)
    assert not hb
    a.drain(XQ)
    a.stamp(9)
    for dt in range(2):
        for q in range(4): a.lg(f'ds_write_b128 v13, {vr(GACC[1]+16*dt+4*q,4)} offset:{PRED[1]+dt*128+q*32}')
    a.wait(vm=T['y'])
    a.lg(f'ds_write_b128 v11, {vr(YR,4)} offset:2560')
    a.lg(f'ds_write_b128 v11, {vr(YR+4,4)} offset:{2560+16*YS}')
    ty = [a.lg(f'ds_read_b64_tr_b16 {vr(YR+2*q,2)}, v219 offset:{2560+q*8*YS}') for q in range(4)]
    a.srd(sT0, P_OUT, XB)
    a(f's_mul_i32 s5, s{ROW64}, {64*896}\ns_lshl_b32 s6, s{CBL}, 7\ns_add_u32 s5, s5, s6\ns_add_u32 s6, s5, {32*896}')
    for q in range(4):
        a.wait(lg=ty[q])
        for e in range(4):
            i = 4 * q + e; src = YR + i // 2
            a(f'v_and_b32 v{XR+e}, s{sMASK}, v{src}' if i & 1 else f'v_lshlrev_b32 v{XR+e}, 16, v{src}')
        for e in range(4):
            i = 4 * q + e
            a(f'v_fmac_f32 v{XV+i}, v{XN+i}, v{XR+e}')
        a.lg(f'ds_write_b128 v10, {vr(XV+4*q,4)} offset:{q*32}')
    a.wait_all(vm=False)
    a('s_barrier')
    te = []
    for k in range(2):
        for h in range(2): te.append(a.lg(f'ds_read_b128 {vr(80+8*k+4*h,4)}, v222 offset:{4*PWH + k*PWH + h*16}'))
    b = GACC[1]
    tp = []
    for p in range(4):
        for h in range(2): tp.append(a.lg(f'ds_read_b128 {vr(b+8*p+4*h,4)}, v220 offset:{PRED[1]+p*PWH+h*16}'))
    a.wait(lg=te[1])
    b0 = GACC[0]
    for e in range(8): a(f'v_add_f32 v{b0+e}, v{b0+e}, v{80+e}')
    for j in range(4): a(f'v_cvt_pk_bf16_f32 v{b0+8+j}, v{b0+2*j}, v{b0+2*j+1}')
    a.vm(f'buffer_store_dwordx4 {vr(b0+8,4)}, v221, {sr(sT0,4)}, s5 offen')
    a.wait(lg=tp[3])
    for e in range(8): a(f'v_add_f32 v{b+e}, v{b+e}, v{b+8+e}')
    for e in range(8): a(f'v_add_f32 v{b+e}, v{b+e}, v{88+e}')
    a.wait(lg=tp[7])
    for e in range(8): a(f'v_add_f32 v{b+16+e}, v{b+16+e}, v{b+24+e}')
    for e in range(8): a(f'v_add_f32 v{b+e}, v{b+e}, v{b+16+e}')
    for j in range(4): a(f'v_cvt_pk_bf16_f32 v{b+8+j}, v{b+2*j}, v{b+2*j+1}')
    a.vm(f'buffer_store_dwordx4 {vr(b+8,4)}, v221, {sr(sT0,4)}, s6 offen')
    if stamps: a.wait_all()
    a.stamp(15); a.stamp_flush(0, P_WS, WS_STAMP)
    a('s_endpgm')

    a('L_helper:')
    a.vm_done = a.vm_n; a.lg_done = a.lg_n
    a('s_sub_u32 s5, s5, 28\ns_lshl_b32 s5, s5, 3\ns_add_u32 s64, s5, s4')
    a('s_cmp_ge_u32 s64, 28\ns_cbranch_scc1 L_end')
    a('s_lshl_b32 s6, s64, 2\ns_add_u32 s6, s6, s3')
    a('s_mul_i32 s7, s6, 14336\ns_mul_i32 s8, s3, 14336')
    a('s_waitcnt lgkmcnt(0)')
    a.srd(sX, P_WD, WB); a.srd(sWS, P_WS, WS_END); a.srd(sWD, P_DBG, 256)
    for i in range(14):
        a(f's_add_u32 m0, s8, {i*1024}\ns_add_u32 s9, s7, {i*1024}')
        twd = a.vm(f'buffer_load_dwordx4 v{VL16}, {sr(sX,4)}, s9 offen lds')
    a('v_lshrrev_b32 v5, 5, v2\nv_lshlrev_b32 v5, 2, v5\nv_bfe_u32 v8, v2, 2, 2\nv_add_u32 v5, v5, v8\nv_mul_u32_u24 v5, 896, v5')
    a('v_bfe_u32 v8, v2, 4, 1\nv_lshlrev_b32 v8, 5, v8\nv_and_b32 v9, 3, v2\nv_lshlrev_b32 v9, 3, v9')
    a('v_add3_u32 v5, v5, v8, v9\nv_add_u32 v8, s8, v5\nv_mov_b32 v5, 0')
    a.wait(vm=twd)
    ttag = a.vm(TAGLD)
    tl = []
    for dt in range(14):
        a.lg(f'ds_read_b64_tr_b16 {vr(16+dt*4,2)}, v8 offset:{dt*64}')
        tl.append(a.lg(f'ds_read_b64_tr_b16 {vr(18+dt*4,2)}, v8 offset:{dt*64+7168}'))
    a(f's_lshl_b32 s9, s6, 11\ns_add_u32 s9, s9, {WS_WDT}')
    for dt in range(14):
        a(f's_add_u32 s10, s9, {(dt>>1)*112*2048 + (dt&1)*1024}')
        a.wait(lg=tl[dt])
        tws = a.vm(f'buffer_store_dwordx4 {vr(16+dt*4,4)}, v{VL16}, {sr(sWS,4)}, s10 offen sc1')
    tag_get(a, ttag, VTAG, TAGLD, 'htag')
    a(f's_lshl_b32 s5, s3, 8\ns_lshl_b32 s6, s64, 3\ns_add_u32 s5, s5, s6\ns_add_u32 s5, s5, {FL2}')
    a.wait(vm=tws)
    a.vm(f'buffer_store_dwordx2 {vr(VTAG,2)}, v{VL0}, {sr(sWS,4)}, s5 offen sc1')
    if stamps: a.wait_all()
    a.stamp(15); a.stamp_flush(1, P_WS, WS_STAMP, which={0, 15})
    a('L_end:\ns_endpgm')
    return a

def build(path, stamps=False):
    a = gen(stamps)
    t, nn = a.text()
    print('instrs', len(a.L), 'nops inserted', nn)
    out = HEADER + '; @launch grid=(256,1,1) block=(256,1,1) lds=163840\n'
    out += '.amdgcn_target "amdgcn-amd-amdhsa--gfx950"\n.text\n'
    out += kernel_text(KN + '_kernel', t)
    out += '.section .rodata,"a"\n' + kd_text(KN + '_kernel', 512, 256)
    open(path, 'w').write(out)

if __name__ == '__main__':
    build(sys.argv[1], len(sys.argv) > 2)
```
